```python
import torch

def _softmax(x, axis=-1):
    return torch.softmax(x, dim=axis)

def _gelu(x):
    return torch.nn.functional.gelu(x, approximate='tanh')

def _silu(x):
    return torch.nn.functional.silu(x)

def _sigmoid(x):
    return torch.sigmoid(x)

def _layernorm(x, axis=-1, eps=1e-05):
    m = x.mean(dim=axis, keepdim=True)
    v = x.var(dim=axis, keepdim=True, unbiased=False)
    return (x - m) / torch.sqrt(v + eps)

def _scatter_add(tgt, idx, src, axis=0):
    return tgt.clone().index_add_(axis, idx, src)

def _segment_sum(src, seg, n):
    out = torch.zeros((n,) + src.shape[1:], dtype=src.dtype)
    return out.index_add_(0, seg, src)

def _pad(x, pw):
    flat = tuple((v for pair in reversed(pw) for v in pair))
    return torch.nn.functional.pad(x, flat)
kernel_name = 'standalone__autoregressive_conv_wavenet__speech'

def setup_inputs():

    _w = lambda a: (lambda t: t.to(torch.bfloat16) if t.is_floating_point() else t)(torch.as_tensor(a))
    B, T, D, K = (2, 16000, 144, 31)
    return {'x': _w((lambda *s: torch.randn(*s, dtype=torch.bfloat16) * 0.1)(B, T, D)), 'w': _w((lambda *s: torch.randn(*s, dtype=torch.bfloat16) * 0.1)(K, D, 2 * D)), 'w_o': _w((lambda *s: torch.randn(*s, dtype=torch.bfloat16) * 0.05)(D, D))}

def reference(x, w, w_o):
    B, T, D = x.shape
    K = w.shape[0]
    dil = 2
    pad = (K - 1) * dil
    xp = _pad(x, ((0, 0), (pad, 0), (0, 0)))
    h = torch.einsum('btc,cd->btd', xp[:, pad:pad + T, :], w[0])
    for i in range(1, K):
        off = pad - i * dil
        h = h + torch.einsum('btc,cd->btd', xp[:, off:off + T, :], w[i])
    f = h[..., :D].clone()
    g = h[..., D:].clone()
    z = torch.tanh(f) * _sigmoid(g)
    return z @ w_o
```

```python
import sys

NAME = "standalone__autoregressive_conv_wavenet__speech"
HDR = """; Kernarg layout for this problem (48 bytes, ptrs only, base s[0:1]):
; @launch grid=(250,1,1) block=(256,1,1) lds=163840
"""

out = []
def e(s): out.append("    " + s)
def lab(s): out.append(s + ":")
def c(s): out.append("    ; " + s)

RING = 18432
SLOT = 9216
XB = 4 * RING
REG = 36864

def wf(b, m):
    r = 40 + 36 * b + 4 * m
    return r
def xf(b, u):
    return 144 + 32 * b + 4 * u
def acc(u, m):
    if u < 4:
        r = 112 + (u * 9 + m) * 4
        return "v[%d:%d]" % (r, r + 3)
    r = ((u - 4) * 9 + m) * 4
    return "a[%d:%d]" % (r, r + 3)
def mfma(u, m, b):
    w = wf(b, m); x = xf(b, u)
    return "v_mfma_f32_16x16x32_bf16 %s, v[%d:%d], a[%d:%d], %s" % (acc(u, m), w, w + 3, x, x + 3, acc(u, m))

def w_reads(b, slot):
    r = []
    for m in range(9):
        for hf in range(2):
            d = wf(b, m) + 2 * hf
            r.append("ds_read_b64_tr_b16 v[%d:%d], v11 offset:%d" % (d, d + 1, slot * SLOT + hf * 2304 + m * 32))
    return r
def x_reads(b):
    r = []
    for u in range(8):
        d = xf(b, u)
        r.append("ds_read_b128 a[%d:%d], v%d offset:%d" % (d, d + 3, 14 + u // 2, (u % 2) * 4608))
    return r
def x_addr_update():
    return [
        "v_add_u32 v13, 64, v13",
        "v_cmp_le_u32 vcc, 0x120, v13",
        None, None,
        "v_cndmask_b32 v18, 64, v20, vcc",
        "v_cndmask_b32 v19, 0, v21, vcc",
        "v_add_u32 v14, v14, v18",
        "v_add_u32 v15, v15, v18",
        "v_add_u32 v16, v16, v18",
        "v_add_u32 v17, v17, v18",
        "v_sub_u32 v13, v13, v19",
    ]
def w_dma(slot):
    g = []
    for i in range(9):
        grp = []
        if i % 4 == 0:
            g.append(["s_add_u32 m0, s33, %d" % (slot * SLOT + (i // 4) * 4096)])
        g.append(["buffer_load_dwordx4 v%d, s[16:19], s34 offen offset:%d lds" % (2 + i, (i % 4) * 1024)])
    g.append(["s_add_u32 s34, s34, 18432"])
    return g

def emit_step(mf, fill):
    for i, m in enumerate(mf):
        for f in fill.get(i, []):
            e(f)
        e(m)
    for f in fill.get(len(mf), []):
        e(f)

def add(fill, slot, ins):
    if ins is None: return
    fill.setdefault(slot, []).append(ins)

ORDER = [(u, m) for u in [4, 5, 6, 7, 0, 1, 2, 3] for m in range(9)]

def step(s_par, dma=True, vm=9):
    b = s_par; nb = 1 - b
    mf = [mfma(u, m, b) for (u, m) in ORDER]
    fill = {}
    add(fill, 0, "s_waitcnt vmcnt(%d) lgkmcnt(0)" % vm)
    for i, r in enumerate(w_reads(nb, nb)):
        add(fill, 1 + i, r)
    xa = x_addr_update()
    for i, r in enumerate(xa):
        add(fill, 2 + i, r)
    for i, r in enumerate(x_reads(nb)):
        add(fill, 19 + i, r)
    if dma:
        add(fill, 30, "s_waitcnt lgkmcnt(8)")
        pos = 31
        for grp in w_dma(nb):
            for ins in grp:
                add(fill, pos, ins)
            pos += 1 if grp[0].startswith("s_") else 4
        assert pos <= 72, pos
    emit_step(mf, fill)

out.append(HDR + '.amdgcn_target "amdgcn-amd-amdhsa--gfx950"\n.text\n.globl %s_kernel\n.p2align 8\n.type %s_kernel,@function' % (NAME, NAME))
lab(NAME + "_kernel")
e("s_cmp_ge_u32 s2, 250")
e("s_cbranch_scc1 L_end")
e("s_load_dwordx8 s[4:11], s[0:1], 0")
e("v_lshrrev_b32 v1, 6, v0")
e("v_and_b32 v0, 63, v0")
e("s_nop 0")
e("v_readfirstlane_b32 s28, v1")
c("tile decode")
e("s_cmp_ge_u32 s2, 125")
e("s_cselect_b32 s32, 1, 0")
e("s_mul_i32 s3, s32, 125")
e("s_sub_u32 s31, s2, s3")
e("s_lshl_b32 s31, s31, 7")
e("s_and_b32 s29, s28, 1")
e("s_lshr_b32 s30, s28, 1")
e("s_mul_i32 s33, s28, %d" % RING)
e("s_mul_i32 s34, s30, %d" % (70 * 18432))
c("lane decode: j=l&15 (v22) g=l>>4 (v23)")
e("v_and_b32 v22, 15, v0")
e("v_lshrrev_b32 v23, 4, v0")
e("s_waitcnt lgkmcnt(0)")
c("SRDs")
e("s_mul_i32 s3, s32, 4608000")
e("s_add_u32 s12, s4, s3")
e("s_addc_u32 s13, s5, 0")
e("s_and_b32 s13, s13, 0xffff")
e("s_mov_b32 s14, 4608000")
e("s_mov_b32 s15, 0x20000")
e("s_mov_b32 s16, s6")
e("s_and_b32 s17, s7, 0xffff")
e("s_mov_b32 s18, 2571264")
e("s_mov_b32 s19, 0x20000")
e("s_mov_b32 s20, s8")
e("s_and_b32 s21, s9, 0xffff")
e("s_mov_b32 s22, 41472")
e("s_mov_b32 s23, 0x20000")
e("s_mov_b32 s24, s10")
e("s_and_b32 s25, s11, 0xffff")
e("s_mov_b32 s26, 9216000")
e("s_mov_b32 s27, 0x20000")
c("X tile DMA: piece j=4i+w ; voff=(t0-60)*288+1024j+16L")
e("s_mul_i32 s3, s31, 288")
e("s_sub_u32 s3, s3, 17280")
e("s_lshl_b32 s40, s28, 10")
e("s_add_u32 s3, s3, s40")
e("v_lshlrev_b32 v24, 4, v0")
e("v_add_u32 v25, s3, v24")
e("s_add_u32 s41, s40, %d" % XB)
e("s_mov_b32 m0, s41")
e("s_cmp_lg_u32 s28, 0")
e("s_cbranch_scc1 L_skipx")
c("wave 0 loads the extra piece 52")
e("v_add_u32 v26, %d, v25" % (13 * 4096))
e("s_add_u32 m0, s41, %d" % (13 * 4096))
e("s_nop 0")
e("buffer_load_dwordx4 v26, s[12:15], 0 offen lds")
e("s_mov_b32 m0, s41")
lab("L_skipx")
for i in range(13):
    e("s_nop 0")
    e("buffer_load_dwordx4 v25, s[12:15], 0 offen lds")
    if i < 12:
        e("v_add_u32 v25, 4096, v25")
        e("s_add_u32 m0, m0, 4096")
c("W DMA voffsets v2..v10")
e("s_mul_i32 s3, s29, 288")
e("s_movk_i32 s42, 3641")
for i in range(9):
    e("v_add_u32 v26, %d, v0" % (64 * i))
    e("v_mul_lo_u32 v27, v26, s42")
    e("v_lshrrev_b32 v27, 16, v27")
    e("v_mul_u32_u24 v28, 18, v27")
    e("v_sub_u32 v28, v26, v28")
    e("v_and_b32 v29, 19, v27")
    e("v_lshrrev_b32 v30, 1, v27")
    e("v_and_b32 v30, 4, v30")
    e("v_lshlrev_b32 v31, 1, v27")
    e("v_and_b32 v31, 8, v31")
    e("v_or3_b32 v29, v29, v30, v31")
    e("v_mul_u32_u24 v29, 576, v29")
    e("v_lshl_add_u32 v29, v28, 4, v29")
    e("v_add_u32 v29, s3, v29")
    e("v_subrev_u32 v%d, %d, v29" % (2 + i, (i % 4) * 1024))
for slot in range(2):
    for grp in w_dma(slot):
        for ins in grp:
            e(ins)
            if ins.startswith("s_add_u32 m0"):
                e("s_nop 0")
c("W tr-read base v11 = ring + (16(g>>1)+4(g&1)+r)*288 + c*8")
e("v_lshrrev_b32 v26, 5, v0")
e("v_lshlrev_b32 v26, 4, v26")
e("v_bfe_u32 v27, v0, 2, 3")
e("v_add_u32 v26, v26, v27")
e("v_mul_u32_u24 v26, 288, v26")
e("v_and_b32 v27, 3, v0")
e("v_lshl_add_u32 v26, v27, 3, v26")
e("v_add_u32 v11, s33, v26")
c("X addresses")
e("s_mul_i32 s3, s30, 160")
e("v_lshlrev_b32 v13, 4, v23")
e("v_add_u32 v13, s3, v13")
e("s_mul_i32 s3, s30, 30")
e("s_sub_u32 s3, 60, s3")
e("v_add_u32 v26, s3, v22")
e("v_mul_u32_u24 v26, 288, v26")
e("v_add_u32 v12, v26, v13")
e("s_lshl_b32 s3, s30, 2")
e("s_lshl_b32 s40, s29, 1")
e("s_or_b32 s43, s3, s40")
for i in range(4):
    e("s_xor_b32 s3, s43, %d" % (2 * i))
    e("s_mul_i32 s3, s3, 4608")
    e("s_add_u32 s3, s3, %d" % XB)
    e("v_add_u32 v%d, s3, v12" % (14 + i))
e("v_mov_b32 v20, -800")
e("v_mov_b32 v21, 288")
c("zero accumulators")
for r in range(112, 256):
    e("v_mov_b32 v%d, 0" % r)
for r in range(144):
    e("v_accvgpr_write_b32 a%d, 0" % r)
e("s_waitcnt vmcnt(9)")
e("s_barrier")
for r in w_reads(0, 0): e(r)
for r in x_reads(0): e(r)
e("s_waitcnt lgkmcnt(8)")
for grp in w_dma(0):
    for ins in grp:
        e(ins)
        if ins.startswith("s_add_u32 m0"):
            e("s_nop 0")
e("s_mov_b32 s35, 33")
out.append(".p2align 6")
lab("L_loop")
step(0)
step(1)
e("s_sub_u32 s35, s35, 1")
e("s_cmp_lg_u32 s35, 0")
e("s_cbranch_scc1 L_loop")
c("step 66, 67")
step(0)
step(1, dma=False)
c("tail")
GIVE = [(u, m) for u in [4, 5, 6, 7] for m in range(9)]
KEEP = [(u, m) for u in [0, 1, 2, 3] for m in range(9)]
fill = {}
add(fill, 0, "s_waitcnt vmcnt(0) lgkmcnt(0)")
for i, r in enumerate(w_reads(1, 1)): add(fill, 1 + i, r)
for i, r in enumerate(x_addr_update()): add(fill, 2 + i, r)
for i, r in enumerate(x_reads(1)): add(fill, 19 + i, r)
c("exchange addresses")
add(fill, 28, "s_mul_i32 s44, s28, %d" % REG)
add(fill, 28, "s_xor_b32 s45, s28, 2")
add(fill, 29, "s_mul_i32 s46, s45, %d" % REG)
add(fill, 29, "s_xor_b32 s47, s28, 3")
add(fill, 30, "s_mul_i32 s47, s47, %d" % REG)
add(fill, 31, "v_add_u32 v25, s44, v24")
add(fill, 32, "v_add_u32 v26, s46, v24")
add(fill, 33, "v_add_u32 v27, s47, v24")
emit_step([mfma(u, m, 0) for (u, m) in GIVE], fill)
e("s_waitcnt lgkmcnt(0)")
e("s_cmp_eq_u32 s30, 0")
e("s_cbranch_scc1 L_nozero")
e("s_mov_b32 exec_lo, 0")
for r in range(32):
    e("v_accvgpr_write_b32 a%d, 0" % (xf(1, 0) + r))
e("s_mov_b64 exec, -1")
e("s_nop 1")
lab("L_nozero")
e("s_barrier")
emit_step([mfma(u, m, 1) for (u, m) in GIVE], {})
mf = [mfma(u, m, 0) for (u, m) in KEEP] + [mfma(u, m, 1) for (u, m) in KEEP]
fill = {}
for t in range(36):
    add(fill, 2 * t, "ds_write_b128 v25, a[%d:%d] offset:%d" % (4 * t, 4 * t + 3, 1024 * t))
emit_step(mf, fill)
e("s_waitcnt lgkmcnt(0)")
e("s_barrier")
c("activation constants: s[50:51]=s1, s[52:53]=1.0, s[54:55]=s2, v[28:29]=s3")
e("s_cmp_eq_u32 s29, 0")
e("s_mov_b32 s51, 0xbfb8aa3b")
e("s_cselect_b32 s50, 0x4038aa3b, s51")
e("s_mov_b32 s51, s50")
e("s_mov_b32 s52, 1.0")
e("s_mov_b32 s53, 1.0")
e("s_cselect_b32 s54, -2.0, 1.0")
e("s_mov_b32 s55, s54")
e("s_cselect_b32 s56, 1.0, 0")
e("v_mov_b32 v28, s56")
e("v_mov_b32 v29, s56")
c("stage1 reads A: tiles u=0,1")
for t in range(18):
    e("ds_read_b128 v[%d:%d], v26 offset:%d" % (40 + 4 * t, 43 + 4 * t, 1024 * t))
    if t == 14: pass
for t in range(18):
    e("s_waitcnt lgkmcnt(%d)" % min(15, 17 - t))
    for h in range(2):
        a = 112 + 4 * t + 2 * h; s = 40 + 4 * t + 2 * h
        e("v_pk_add_f32 v[%d:%d], v[%d:%d], v[%d:%d]" % (a, a + 1, a, a + 1, s, s + 1))
c("stage1 reads B: tiles u=2,3")
for t in range(18):
    e("ds_read_b128 v[%d:%d], v26 offset:%d" % (40 + 4 * t, 43 + 4 * t, 1024 * (18 + t)))
c("w_o DMA: block s45 (<3)")
e("s_cmp_ge_u32 s45, 3")
e("s_cbranch_scc1 L_nowo")
e("s_mul_i32 s3, s45, 13824")
e("v_add_u32 v30, s3, v24")
e("s_mov_b32 m0, s46")
for i in range(14):
    if i % 4 == 0 and i > 0:
        e("s_add_u32 m0, m0, 4096")
        e("v_add_u32 v30, 4096, v30")
    else:
        e("s_nop 0")
    e("buffer_load_dwordx4 v30, s[20:23], 0 offen offset:%d lds" % ((i % 4) * 1024))
lab("L_nowo")

def act_tile(a):
    r = []
    for h in (0, 2):
        r.append("v_pk_mul_f32 v[%d:%d], v[%d:%d], s[50:51]" % (a + h, a + h + 1, a + h, a + h + 1))
    for k in range(4):
        r.append("v_exp_f32 v%d, v%d" % (a + k, a + k))
    r.append("s_nop 0")
    for h in (0, 2):
        r.append("v_pk_add_f32 v[%d:%d], v[%d:%d], s[52:53]" % (a + h, a + h + 1, a + h, a + h + 1))
    for k in range(4):
        r.append("v_rcp_f32 v%d, v%d" % (a + k, a + k))
    r.append("s_nop 0")
    for h in (0, 2):
        r.append("v_pk_fma_f32 v[%d:%d], v[%d:%d], s[54:55], v[28:29]" % (a + h, a + h + 1, a + h, a + h + 1))
    return r
for t in range(18):
    e("s_waitcnt lgkmcnt(%d)" % min(15, 17 - t))
    for h in range(2):
        a = 184 + 4 * t + 2 * h; s = 40 + 4 * t + 2 * h
        e("v_pk_add_f32 v[%d:%d], v[%d:%d], v[%d:%d]" % (a, a + 1, a, a + 1, s, s + 1))
for t in range(18):
    a = 184 + 4 * t
    for r in act_tile(a): e(r)
    e("ds_write_b128 v26, v[%d:%d] offset:%d" % (a, a + 3, 1024 * (18 + t)))
for t in range(18):
    for r in act_tile(112 + 4 * t): e(r)
c("w_o tr-read bases: v30 = (4g+r)*288 + 16c ; v31 = v30+73728 ; v32 = (4g+r)*288+8c+256 ; v33 = v32+73728")
e("v_lshrrev_b32 v34, 2, v0")
e("v_mul_u32_u24 v34, 288, v34")
e("v_and_b32 v35, 3, v0")
e("v_lshl_add_u32 v30, v35, 4, v34")
e("v_add_u32 v31, %d, v30" % (2 * REG))
e("v_lshl_add_u32 v32, v35, 3, v34")
e("v_add_u32 v32, 256, v32")
e("v_add_u32 v33, %d, v32" % (2 * REG))
c("output voffsets: v36 (dwordx4), v37 (dwordx2)")
e("s_mul_i32 s3, s32, 16000")
e("s_add_u32 s3, s3, s31")
e("s_lshl_b32 s40, s43, 4")
e("s_add_u32 s3, s3, s40")
e("v_add_u32 v34, s3, v22")
e("s_movk_i32 s40, 288")
e("v_mul_lo_u32 v34, v34, s40")
e("v_lshl_add_u32 v36, v23, 4, v34")
e("v_lshl_add_u32 v37, v23, 3, v34")
e("s_movk_i32 s48, 4608")
e("s_waitcnt vmcnt(0) lgkmcnt(0)")
e("s_barrier")
c("stage2 reads")
for t in range(18):
    e("ds_read_b128 v[%d:%d], v27 offset:%d" % (184 + 4 * t, 187 + 4 * t, 1024 * (18 + t)))
for t in range(18):
    e("s_waitcnt lgkmcnt(%d)" % min(15, 17 - t))
    a = 112 + 4 * t; p = 184 + 4 * t
    for h in (0, 2):
        e("v_pk_mul_f32 v[%d:%d], v[%d:%d], v[%d:%d]" % (a + h, a + h + 1, a + h, a + h + 1, p + h, p + h + 1))
    z = 184 + 2 * t
    e("v_cvt_pk_bf16_f32 v%d, v%d, v%d" % (z, a, a + 1))
    e("v_cvt_pk_bf16_f32 v%d, v%d, v%d" % (z + 1, a + 2, a + 3))
c("GEMM2")
def wo_read(n, grp, dst):
    reg = grp // 3
    if n < 8:
        base = 30 if reg < 2 else 31
        off = (reg % 2) * REG if reg < 2 else 0
        off += (grp % 3) * 4608 + 64 * (n // 2) + 8 * (n % 2)
    else:
        base = 32 if reg < 2 else 33
        off = (reg % 2) * REG if reg < 2 else 0
        off += (grp % 3) * 4608
    return "ds_read_b64_tr_b16 a[%d:%d], v%d offset:%d" % (dst, dst + 1, base, off)
def woreg(n, grp): return n * 18 + 2 * grp
def acc2(u, n): return 40 + (u * 9 + n) * 4
for n in range(9):
    for grp in range(9):
        e(wo_read(n, grp, woreg(n, grp)))
    e("s_waitcnt lgkmcnt(0)")
    for p in range(5):
        for u in range(2):
            d = acc2(u, n); z = 184 + 18 * u + 4 * p; w = woreg(n, 2 * p)
            cs = "0" if p == 0 else "v[%d:%d]" % (d, d + 3)
            if p < 4:
                e("v_mfma_f32_16x16x32_bf16 v[%d:%d], a[%d:%d], v[%d:%d], %s" % (d, d + 3, w, w + 3, z, z + 3, cs))
            else:
                e("v_mfma_f32_16x16x16_bf16 v[%d:%d], a[%d:%d], v[%d:%d], %s" % (d, d + 3, w, w + 1, z, z + 1, cs))
e("s_nop 15")
c("convert + store")
for u in range(2):
    so = "0" if u == 0 else "s48"
    for P in range(4):
        o = 112 + (u * 5 + P) * 4
        for ee in range(2):
            d = acc2(u, 2 * P + ee)
            e("v_cvt_pk_bf16_f32 v%d, v%d, v%d" % (o + 2 * ee, d, d + 1))
            e("v_cvt_pk_bf16_f32 v%d, v%d, v%d" % (o + 2 * ee + 1, d + 2, d + 3))
        e("buffer_store_dwordx4 v[%d:%d], v36, s[24:27], %s offen offset:%d" % (o, o + 3, so, 64 * P))
    o = 112 + (u * 5 + 4) * 4
    d = acc2(u, 8)
    e("v_cvt_pk_bf16_f32 v%d, v%d, v%d" % (o, d, d + 1))
    e("v_cvt_pk_bf16_f32 v%d, v%d, v%d" % (o + 1, d + 2, d + 3))
    e("buffer_store_dwordx2 v[%d:%d], v37, s[24:27], %s offen offset:256" % (o, o + 1, so))
lab("L_end")
e("s_endpgm")
out.append(""".section .rodata,"a"
.p2align 6
.amdhsa_kernel %s_kernel
  .amdhsa_next_free_vgpr 512
  .amdhsa_next_free_sgpr 64
  .amdhsa_accum_offset 256
  .amdhsa_group_segment_fixed_size 0
  .amdhsa_kernarg_size 48
  .amdhsa_user_sgpr_count 2
  .amdhsa_user_sgpr_kernarg_segment_ptr 1
  .amdhsa_system_sgpr_workgroup_id_x 1
.end_amdhsa_kernel""" % NAME)
open(sys.argv[1] if len(sys.argv) > 1 else "cdna_kernels/%s.s" % NAME, "w").write("\n".join(out) + "\n")
```

```python
import sys

NAME = "standalone__autoregressive_conv_wavenet__speech"
HDR = """; Kernarg layout for this problem (48 bytes, ptrs only, base s[0:1]):
; @launch grid=(250,1,1) block=(256,1,1) lds=163840
"""

out = []
def e(s): out.append("    " + s)
def lab(s): out.append(s + ":")
def c(s): out.append("    ; " + s)

STAMPS = "--stamps" in sys.argv
nst = [0]
def stamp():
    if not STAMPS: return
    r = 64 + 4 * nst[0]
    e("s_memtime s[%d:%d]" % (r, r + 1))
    e("s_memrealtime s[%d:%d]" % (r + 2, r + 3))
    e("s_waitcnt lgkmcnt(0)")
    nst[0] += 1
def stamp_flush():
    if not STAMPS: return
    n = nst[0]
    e("s_load_dwordx2 s[4:5], s[0:1], 40")
    e("s_lshl_b32 s3, s2, 2")
    e("s_add_u32 s3, s3, s28")
    e("s_mul_i32 s3, s3, %d" % (n * 16))
    e("s_waitcnt lgkmcnt(0)")
    e("s_add_u32 s4, s4, s3")
    e("s_addc_u32 s5, s5, 0")
    e("v_mov_b32 v4, 0")
    for i in range(n):
        r = 64 + 4 * i
        for k in range(4):
            e("v_mov_b32 v%d, s%d" % (8 + k, r + k))
        e("global_store_dwordx4 v4, v[8:11], s[4:5] offset:%d" % (16 * i))
        e("s_nop 1")
    sys.stderr.write("stamps: %d\n" % n)

RING = 18432
SLOT = 9216
XB = 4 * RING
REG = 36864

def wf(b, m):
    r = 40 + 36 * b + 4 * m
    return r
def xf(b, u):
    return 144 + 32 * b + 4 * u
def acc(u, m):
    if u < 4:
        r = 112 + (u * 9 + m) * 4
        return "v[%d:%d]" % (r, r + 3)
    r = ((u - 4) * 9 + m) * 4
    return "a[%d:%d]" % (r, r + 3)
def mfma(u, m, b):
    w = wf(b, m); x = xf(b, u)
    return "v_mfma_f32_16x16x32_bf16 %s, v[%d:%d], a[%d:%d], %s" % (acc(u, m), w, w + 3, x, x + 3, acc(u, m))

def w_reads(b, slot):
    r = []
    for m in range(9):
        for hf in range(2):
            d = wf(b, m) + 2 * hf
            r.append("ds_read_b64_tr_b16 v[%d:%d], v11 offset:%d" % (d, d + 1, slot * SLOT + hf * 2304 + m * 32))
    return r
def x_reads(b):
    r = []
    for u in range(8):
        d = xf(b, u)
        r.append("ds_read_b128 a[%d:%d], v%d offset:%d" % (d, d + 3, 14 + u // 2, (u % 2) * 4608))
    return r
def x_addr_update():
    return [
        "v_add_u32 v13, 64, v13",
        "v_cmp_le_u32 vcc, 0x120, v13",
        None, None,
        "v_cndmask_b32 v18, 64, v20, vcc",
        "v_cndmask_b32 v19, 0, v21, vcc",
        "v_add_u32 v14, v14, v18",
        "v_add_u32 v15, v15, v18",
        "v_add_u32 v16, v16, v18",
        "v_add_u32 v17, v17, v18",
        "v_sub_u32 v13, v13, v19",
    ]
def w_dma(slot):
    g = []
    for i in range(9):
        grp = []
        if i % 4 == 0:
            g.append(["s_add_u32 m0, s33, %d" % (slot * SLOT + (i // 4) * 4096)])
        g.append(["buffer_load_dwordx4 v%d, s[16:19], s34 offen offset:%d lds" % (2 + i, (i % 4) * 1024)])
    g.append(["s_add_u32 s34, s34, 18432"])
    return g

def emit_step(mf, fill):
    for i, m in enumerate(mf):
        for f in fill.get(i, []):
            e(f)
        e(m)
    for f in fill.get(len(mf), []):
        e(f)

def add(fill, slot, ins):
    if ins is None: return
    fill.setdefault(slot, []).append(ins)

ORDER = [(u, m) for u in [4, 5, 6, 7, 0, 1, 2, 3] for m in range(9)]

def step(s_par, dma=True, vm=9):
    b = s_par; nb = 1 - b
    mf = [mfma(u, m, b) for (u, m) in ORDER]
    fill = {}
    add(fill, 0, "s_waitcnt vmcnt(%d) lgkmcnt(0)" % vm)
    for i, r in enumerate(w_reads(nb, nb)):
        add(fill, 1 + i, r)
    xa = x_addr_update()
    for i, r in enumerate(xa):
        add(fill, 2 + i, r)
    for i, r in enumerate(x_reads(nb)):
        add(fill, 19 + i, r)
    if dma:
        add(fill, 30, "s_waitcnt lgkmcnt(8)")
        pos = 31
        for grp in w_dma(nb):
            for ins in grp:
                add(fill, pos, ins)
            pos += 1 if grp[0].startswith("s_") else 4
        assert pos <= 72, pos
    emit_step(mf, fill)

out.append(HDR + '.amdgcn_target "amdgcn-amd-amdhsa--gfx950"\n.text\n.globl %s_kernel\n.p2align 8\n.type %s_kernel,@function' % (NAME, NAME))
lab(NAME + "_kernel")
e("s_cmp_ge_u32 s2, 250")
e("s_cbranch_scc1 L_end")
stamp()
e("s_load_dwordx8 s[4:11], s[0:1], 0")
e("v_lshrrev_b32 v1, 6, v0")
e("v_and_b32 v0, 63, v0")
e("s_nop 0")
e("v_readfirstlane_b32 s28, v1")
c("tile decode")
e("s_cmp_ge_u32 s2, 125")
e("s_cselect_b32 s32, 1, 0")
e("s_mul_i32 s3, s32, 125")
e("s_sub_u32 s31, s2, s3")
e("s_lshl_b32 s31, s31, 7")
e("s_and_b32 s29, s28, 1")
e("s_lshr_b32 s30, s28, 1")
e("s_mul_i32 s33, s28, %d" % RING)
e("s_mul_i32 s34, s30, %d" % (70 * 18432))
c("lane decode: j=l&15 (v22) g=l>>4 (v23)")
e("v_and_b32 v22, 15, v0")
e("v_lshrrev_b32 v23, 4, v0")
e("s_waitcnt lgkmcnt(0)")
c("SRDs")
e("s_mul_i32 s3, s32, 4608000")
e("s_add_u32 s12, s4, s3")
e("s_addc_u32 s13, s5, 0")
e("s_and_b32 s13, s13, 0xffff")
e("s_mov_b32 s14, 4608000")
e("s_mov_b32 s15, 0x20000")
e("s_mov_b32 s16, s6")
e("s_and_b32 s17, s7, 0xffff")
e("s_mov_b32 s18, 2571264")
e("s_mov_b32 s19, 0x20000")
e("s_mov_b32 s20, s8")
e("s_and_b32 s21, s9, 0xffff")
e("s_mov_b32 s22, 41472")
e("s_mov_b32 s23, 0x20000")
e("s_mov_b32 s24, s10")
e("s_and_b32 s25, s11, 0xffff")
e("s_mov_b32 s26, 9216000")
e("s_mov_b32 s27, 0x20000")
c("X tile DMA: piece j=4i+w ; voff=(t0-60)*288+1024j+16L")
e("s_mul_i32 s3, s31, 288")
e("s_sub_u32 s3, s3, 17280")
e("s_lshl_b32 s40, s28, 10")
e("s_add_u32 s3, s3, s40")
e("v_lshlrev_b32 v24, 4, v0")
e("v_add_u32 v25, s3, v24")
e("s_add_u32 s41, s40, %d" % XB)
e("s_mov_b32 m0, s41")
e("s_cmp_lg_u32 s28, 0")
e("s_cbranch_scc1 L_skipx")
c("wave 0 loads the extra piece 52")
e("v_add_u32 v26, %d, v25" % (13 * 4096))
e("s_add_u32 m0, s41, %d" % (13 * 4096))
e("s_nop 0")
e("buffer_load_dwordx4 v26, s[12:15], 0 offen lds")
e("s_mov_b32 m0, s41")
lab("L_skipx")
for i in range(13):
    e("s_nop 0")
    e("buffer_load_dwordx4 v25, s[12:15], 0 offen lds")
    if i < 12:
        e("v_add_u32 v25, 4096, v25")
        e("s_add_u32 m0, m0, 4096")
c("W DMA voffsets v2..v10")
e("s_mul_i32 s3, s29, 288")
e("s_movk_i32 s42, 3641")
for i in range(9):
    e("v_add_u32 v26, %d, v0" % (64 * i))
    e("v_mul_lo_u32 v27, v26, s42")
    e("v_lshrrev_b32 v27, 16, v27")
    e("v_mul_u32_u24 v28, 18, v27")
    e("v_sub_u32 v28, v26, v28")
    e("v_and_b32 v29, 19, v27")
    e("v_lshrrev_b32 v30, 1, v27")
    e("v_and_b32 v30, 4, v30")
    e("v_lshlrev_b32 v31, 1, v27")
    e("v_and_b32 v31, 8, v31")
    e("v_or3_b32 v29, v29, v30, v31")
    e("v_mul_u32_u24 v29, 576, v29")
    e("v_lshl_add_u32 v29, v28, 4, v29")
    e("v_add_u32 v29, s3, v29")
    e("v_subrev_u32 v%d, %d, v29" % (2 + i, (i % 4) * 1024))
for slot in range(2):
    for grp in w_dma(slot):
        for ins in grp:
            e(ins)
            if ins.startswith("s_add_u32 m0"):
                e("s_nop 0")
c("W tr-read base v11 = ring + (16(g>>1)+4(g&1)+r)*288 + c*8")
e("v_lshrrev_b32 v26, 5, v0")
e("v_lshlrev_b32 v26, 4, v26")
e("v_bfe_u32 v27, v0, 2, 3")
e("v_add_u32 v26, v26, v27")
e("v_mul_u32_u24 v26, 288, v26")
e("v_and_b32 v27, 3, v0")
e("v_lshl_add_u32 v26, v27, 3, v26")
e("v_add_u32 v11, s33, v26")
c("X addresses")
e("s_mul_i32 s3, s30, 160")
e("v_lshlrev_b32 v13, 4, v23")
e("v_add_u32 v13, s3, v13")
e("s_mul_i32 s3, s30, 30")
e("s_sub_u32 s3, 60, s3")
e("v_add_u32 v26, s3, v22")
e("v_mul_u32_u24 v26, 288, v26")
e("v_add_u32 v12, v26, v13")
e("s_lshl_b32 s3, s30, 2")
e("s_lshl_b32 s40, s29, 1")
e("s_or_b32 s43, s3, s40")
for i in range(4):
    e("s_xor_b32 s3, s43, %d" % (2 * i))
    e("s_mul_i32 s3, s3, 4608")
    e("s_add_u32 s3, s3, %d" % XB)
    e("v_add_u32 v%d, s3, v12" % (14 + i))
e("v_mov_b32 v20, -800")
e("v_mov_b32 v21, 288")
c("zero accumulators")
for r in range(112, 256):
    e("v_mov_b32 v%d, 0" % r)
for r in range(144):
    e("v_accvgpr_write_b32 a%d, 0" % r)
e("s_waitcnt vmcnt(9)")
e("s_barrier")
stamp()
for r in w_reads(0, 0): e(r)
for r in x_reads(0): e(r)
e("s_waitcnt lgkmcnt(8)")
for grp in w_dma(0):
    for ins in grp:
        e(ins)
        if ins.startswith("s_add_u32 m0"):
            e("s_nop 0")
e("s_mov_b32 s35, 33")
stamp()
out.append(".p2align 6")
lab("L_loop")
step(0)
step(1)
e("s_sub_u32 s35, s35, 1")
e("s_cmp_lg_u32 s35, 0")
e("s_cbranch_scc1 L_loop")
c("step 66, 67")
step(0)
step(1, dma=False)
stamp()
c("tail")
GIVE = [(u, m) for u in [4, 5, 6, 7] for m in range(9)]
KEEP = [(u, m) for u in [0, 1, 2, 3] for m in range(9)]
fill = {}
add(fill, 0, "s_waitcnt vmcnt(0) lgkmcnt(0)")
for i, r in enumerate(w_reads(1, 1)): add(fill, 1 + i, r)
for i, r in enumerate(x_addr_update()): add(fill, 2 + i, r)
for i, r in enumerate(x_reads(1)): add(fill, 19 + i, r)
c("exchange addresses")
add(fill, 28, "s_mul_i32 s44, s28, %d" % REG)
add(fill, 28, "s_xor_b32 s45, s28, 2")
add(fill, 29, "s_mul_i32 s46, s45, %d" % REG)
add(fill, 29, "s_xor_b32 s47, s28, 3")
add(fill, 30, "s_mul_i32 s47, s47, %d" % REG)
add(fill, 31, "v_add_u32 v25, s44, v24")
add(fill, 32, "v_add_u32 v26, s46, v24")
add(fill, 33, "v_add_u32 v27, s47, v24")
emit_step([mfma(u, m, 0) for (u, m) in GIVE], fill)
e("s_waitcnt lgkmcnt(0)")
e("s_cmp_eq_u32 s30, 0")
e("s_cbranch_scc1 L_nozero")
e("s_mov_b32 exec_lo, 0")
for r in range(32):
    e("v_accvgpr_write_b32 a%d, 0" % (xf(1, 0) + r))
e("s_mov_b64 exec, -1")
e("s_nop 1")
lab("L_nozero")
e("s_barrier")
emit_step([mfma(u, m, 1) for (u, m) in GIVE], {})
mf = [mfma(u, m, 0) for (u, m) in KEEP] + [mfma(u, m, 1) for (u, m) in KEEP]
fill = {}
for t in range(36):
    add(fill, 2 * t, "ds_write_b128 v25, a[%d:%d] offset:%d" % (4 * t, 4 * t + 3, 1024 * t))
emit_step(mf, fill)
e("s_waitcnt lgkmcnt(0)")
e("s_barrier")
stamp()
c("activation constants: s[50:51]=s1, s[52:53]=1.0, s[54:55]=s2, v[28:29]=s3")
e("s_cmp_eq_u32 s29, 0")
e("s_mov_b32 s51, 0xbfb8aa3b")
e("s_cselect_b32 s50, 0x4038aa3b, s51")
e("s_mov_b32 s51, s50")
e("s_mov_b32 s52, 1.0")
e("s_mov_b32 s53, 1.0")
e("s_cselect_b32 s54, -2.0, 1.0")
e("s_mov_b32 s55, s54")
e("s_cselect_b32 s56, 1.0, 0")
e("v_mov_b32 v28, s56")
e("v_mov_b32 v29, s56")
c("stage1 reads A: tiles u=0,1")
for t in range(18):
    e("ds_read_b128 v[%d:%d], v26 offset:%d" % (40 + 4 * t, 43 + 4 * t, 1024 * t))
    if t == 14: pass
for t in range(18):
    e("s_waitcnt lgkmcnt(%d)" % min(15, 17 - t))
    for h in range(2):
        a = 112 + 4 * t + 2 * h; s = 40 + 4 * t + 2 * h
        e("v_pk_add_f32 v[%d:%d], v[%d:%d], v[%d:%d]" % (a, a + 1, a, a + 1, s, s + 1))
c("stage1 reads B: tiles u=2,3")
for t in range(18):
    e("ds_read_b128 v[%d:%d], v26 offset:%d" % (40 + 4 * t, 43 + 4 * t, 1024 * (18 + t)))
c("w_o DMA: block s45 (<3)")
e("s_cmp_ge_u32 s45, 3")
e("s_cbranch_scc1 L_nowo")
e("s_mul_i32 s3, s45, 13824")
e("v_add_u32 v30, s3, v24")
e("s_mov_b32 m0, s46")
for i in range(14):
    if i % 4 == 0 and i > 0:
        e("s_add_u32 m0, m0, 4096")
        e("v_add_u32 v30, 4096, v30")
    else:
        e("s_nop 0")
    e("buffer_load_dwordx4 v30, s[20:23], 0 offen offset:%d lds" % ((i % 4) * 1024))
lab("L_nowo")

def act_tile(a):
    r = []
    for h in (0, 2):
        r.append("v_pk_mul_f32 v[%d:%d], v[%d:%d], s[50:51]" % (a + h, a + h + 1, a + h, a + h + 1))
    for k in range(4):
        r.append("v_exp_f32 v%d, v%d" % (a + k, a + k))
    r.append("s_nop 0")
    for h in (0, 2):
        r.append("v_pk_add_f32 v[%d:%d], v[%d:%d], s[52:53]" % (a + h, a + h + 1, a + h, a + h + 1))
    for k in range(4):
        r.append("v_rcp_f32 v%d, v%d" % (a + k, a + k))
    r.append("s_nop 0")
    for h in (0, 2):
        r.append("v_pk_fma_f32 v[%d:%d], v[%d:%d], s[54:55], v[28:29]" % (a + h, a + h + 1, a + h, a + h + 1))
    return r
for t in range(18):
    e("s_waitcnt lgkmcnt(%d)" % min(15, 17 - t))
    for h in range(2):
        a = 184 + 4 * t + 2 * h; s = 40 + 4 * t + 2 * h
        e("v_pk_add_f32 v[%d:%d], v[%d:%d], v[%d:%d]" % (a, a + 1, a, a + 1, s, s + 1))
for t in range(18):
    a = 184 + 4 * t
    for r in act_tile(a): e(r)
    e("ds_write_b128 v26, v[%d:%d] offset:%d" % (a, a + 3, 1024 * (18 + t)))
for t in range(18):
    for r in act_tile(112 + 4 * t): e(r)
c("w_o tr-read bases: v30 = (4g+r)*288 + 16c ; v31 = v30+73728 ; v32 = (4g+r)*288+8c+256 ; v33 = v32+73728")
e("v_lshrrev_b32 v34, 2, v0")
e("v_mul_u32_u24 v34, 288, v34")
e("v_and_b32 v35, 3, v0")
e("v_lshl_add_u32 v30, v35, 4, v34")
e("v_add_u32 v31, %d, v30" % (2 * REG))
e("v_lshl_add_u32 v32, v35, 3, v34")
e("v_add_u32 v32, 256, v32")
e("v_add_u32 v33, %d, v32" % (2 * REG))
c("output voffsets: v36 (dwordx4), v37 (dwordx2)")
e("s_mul_i32 s3, s32, 16000")
e("s_add_u32 s3, s3, s31")
e("s_lshl_b32 s40, s43, 4")
e("s_add_u32 s3, s3, s40")
e("v_add_u32 v34, s3, v22")
e("s_movk_i32 s40, 288")
e("v_mul_lo_u32 v34, v34, s40")
e("v_lshl_add_u32 v36, v23, 4, v34")
e("v_lshl_add_u32 v37, v23, 3, v34")
e("s_movk_i32 s48, 4608")
e("s_waitcnt vmcnt(0) lgkmcnt(0)")
e("s_barrier")
stamp()
c("stage2 reads")
for t in range(18):
    e("ds_read_b128 v[%d:%d], v27 offset:%d" % (184 + 4 * t, 187 + 4 * t, 1024 * (18 + t)))
for t in range(18):
    e("s_waitcnt lgkmcnt(%d)" % min(15, 17 - t))
    a = 112 + 4 * t; p = 184 + 4 * t
    for h in (0, 2):
        e("v_pk_mul_f32 v[%d:%d], v[%d:%d], v[%d:%d]" % (a + h, a + h + 1, a + h, a + h + 1, p + h, p + h + 1))
    z = 184 + 2 * t
    e("v_cvt_pk_bf16_f32 v%d, v%d, v%d" % (z, a, a + 1))
    e("v_cvt_pk_bf16_f32 v%d, v%d, v%d" % (z + 1, a + 2, a + 3))
c("GEMM2")
def wo_read(n, grp, dst):
    reg = grp // 3
    if n < 8:
        base = 30 if reg < 2 else 31
        off = (reg % 2) * REG if reg < 2 else 0
        off += (grp % 3) * 4608 + 64 * (n // 2) + 8 * (n % 2)
    else:
        base = 32 if reg < 2 else 33
        off = (reg % 2) * REG if reg < 2 else 0
        off += (grp % 3) * 4608
    return "ds_read_b64_tr_b16 a[%d:%d], v%d offset:%d" % (dst, dst + 1, base, off)
def woreg(n, grp): return n * 18 + 2 * grp
def acc2(u, n): return 40 + (u * 9 + n) * 4
for n in range(9):
    for grp in range(9):
        e(wo_read(n, grp, woreg(n, grp)))
    e("s_waitcnt lgkmcnt(0)")
    for p in range(5):
        for u in range(2):
            d = acc2(u, n); z = 184 + 18 * u + 4 * p; w = woreg(n, 2 * p)
            cs = "0" if p == 0 else "v[%d:%d]" % (d, d + 3)
            if p < 4:
                e("v_mfma_f32_16x16x32_bf16 v[%d:%d], a[%d:%d], v[%d:%d], %s" % (d, d + 3, w, w + 3, z, z + 3, cs))
            else:
                e("v_mfma_f32_16x16x16_bf16 v[%d:%d], a[%d:%d], v[%d:%d], %s" % (d, d + 3, w, w + 1, z, z + 1, cs))
e("s_nop 15")
c("convert + store")
for u in range(2):
    so = "0" if u == 0 else "s48"
    for P in range(4):
        o = 112 + (u * 5 + P) * 4
        for ee in range(2):
            d = acc2(u, 2 * P + ee)
            e("v_cvt_pk_bf16_f32 v%d, v%d, v%d" % (o + 2 * ee, d, d + 1))
            e("v_cvt_pk_bf16_f32 v%d, v%d, v%d" % (o + 2 * ee + 1, d + 2, d + 3))
        e("buffer_store_dwordx4 v[%d:%d], v36, s[24:27], %s offen offset:%d" % (o, o + 3, so, 64 * P))
    o = 112 + (u * 5 + 4) * 4
    d = acc2(u, 8)
    e("v_cvt_pk_bf16_f32 v%d, v%d, v%d" % (o, d, d + 1))
    e("v_cvt_pk_bf16_f32 v%d, v%d, v%d" % (o + 1, d + 2, d + 3))
    e("buffer_store_dwordx2 v[%d:%d], v37, s[24:27], %s offen offset:256" % (o, o + 1, so))
if STAMPS:
    stamp()
    e("s_waitcnt vmcnt(0)")
    stamp()
    stamp_flush()
lab("L_end")
e("s_endpgm")
out.append(""".section .rodata,"a"
.p2align 6
.amdhsa_kernel %s_kernel
  .amdhsa_next_free_vgpr 512
  .amdhsa_next_free_sgpr 102
  .amdhsa_accum_offset 256
  .amdhsa_group_segment_fixed_size 0
  .amdhsa_kernarg_size 48
  .amdhsa_user_sgpr_count 2
  .amdhsa_user_sgpr_kernarg_segment_ptr 1
  .amdhsa_system_sgpr_workgroup_id_x 1
.end_amdhsa_kernel""" % NAME)
args = [a for a in sys.argv[1:] if not a.startswith("--")]
open(args[0] if args else "cdna_kernels/%s.s" % NAME, "w").write("\n".join(out) + "\n")
```

```python
import sys

NAME = "standalone__autoregressive_conv_wavenet__speech"
HDR = """; Kernarg layout for this problem (48 bytes, ptrs only, base s[0:1]):
; @launch grid=(250,1,1) block=(256,1,1) lds=163840
"""

out = []
def e(s): out.append("    " + s)
def lab(s): out.append(s + ":")
def c(s): out.append("    ; " + s)

STAMPS = "--stamps" in sys.argv
nst = [0]
def stamp():
    if not STAMPS: return
    r = 64 + 4 * nst[0]
    e("s_memtime s[%d:%d]" % (r, r + 1))
    e("s_memrealtime s[%d:%d]" % (r + 2, r + 3))
    e("s_waitcnt lgkmcnt(0)")
    nst[0] += 1
def dbg_flush():
    n = nst[0]
    e("s_load_dwordx2 s[4:5], s[0:1], 32")
    e("s_waitcnt lgkmcnt(0)")
    e("v_mov_b32 v4, 0")
    e("s_not_b32 s3, s66")
    e("v_mov_b32 v8, s3")
    e("v_mov_b32 v9, s%d" % (64 + 4 * (n - 1) + 2))
    e("s_mov_b64 exec, 1")
    e("global_atomic_umax v4, v8, s[4:5]")
    e("global_atomic_umax v4, v9, s[4:5] offset:4")
    e("s_lshl_b32 s3, s2, 2")
    e("s_add_u32 s3, s3, s28")
    e("s_cmp_lg_u32 s3, 400")
    e("s_cbranch_scc1 L_end")
    for i in range(n - 1):
        r = 64 + 4 * i
        e("s_sub_u32 s3, s%d, s%d" % (r + 4, r))
        e("v_mov_b32 v8, s3")
        e("s_sub_u32 s3, s%d, s%d" % (r + 6, r + 2))
        e("v_mov_b32 v9, s3")
        e("global_store_dwordx2 v4, v[8:9], s[4:5] offset:%d" % (8 + 8 * i))
        e("s_nop 1")
def stamp_flush():
    if not STAMPS: return
    if "--dbg" in sys.argv: return dbg_flush()
    n = nst[0]
    e("s_load_dwordx2 s[4:5], s[0:1], 40")
    e("s_lshl_b32 s3, s2, 2")
    e("s_add_u32 s3, s3, s28")
    e("s_mul_i32 s3, s3, %d" % (n * 16))
    e("s_waitcnt lgkmcnt(0)")
    e("s_add_u32 s4, s4, s3")
    e("s_addc_u32 s5, s5, 0")
    e("v_mov_b32 v4, 0")
    for i in range(n):
        r = 64 + 4 * i
        for k in range(4):
            e("v_mov_b32 v%d, s%d" % (8 + k, r + k))
        e("global_store_dwordx4 v4, v[8:11], s[4:5] offset:%d" % (16 * i))
        e("s_nop 1")
    sys.stderr.write("stamps: %d\n" % n)

RING = 18432
SLOT = 9216
XB = 4 * RING
REG = 36864

def wf(b, m):
    r = 40 + 36 * b + 4 * m
    return r
def xf(b, u):
    return 144 + 32 * b + 4 * u
def acc(u, m):
    if u < 4:
        r = 112 + (u * 9 + m) * 4
        return "v[%d:%d]" % (r, r + 3)
    r = ((u - 4) * 9 + m) * 4
    return "a[%d:%d]" % (r, r + 3)
def mfma(u, m, b):
    w = wf(b, m); x = xf(b, u)
    return "v_mfma_f32_16x16x32_bf16 %s, v[%d:%d], a[%d:%d], %s" % (acc(u, m), w, w + 3, x, x + 3, acc(u, m))

def w_reads(b, slot):
    r = []
    for m in range(9):
        for hf in range(2):
            d = wf(b, m) + 2 * hf
            r.append("ds_read_b64_tr_b16 v[%d:%d], v11 offset:%d" % (d, d + 1, slot * SLOT + hf * 2304 + m * 32))
    return r
def x_reads(b):
    r = []
    for u in range(8):
        d = xf(b, u)
        r.append("ds_read_b128 a[%d:%d], v%d offset:%d" % (d, d + 3, 14 + u // 2, (u % 2) * 4608))
    return r
def x_addr_update():
    return [
        "v_add_u32 v13, 64, v13",
        "v_cmp_le_u32 vcc, 0x120, v13",
        None, None,
        "v_cndmask_b32 v18, 64, v20, vcc",
        "v_cndmask_b32 v19, 0, v21, vcc",
        "v_add_u32 v14, v14, v18",
        "v_add_u32 v15, v15, v18",
        "v_add_u32 v16, v16, v18",
        "v_add_u32 v17, v17, v18",
        "v_sub_u32 v13, v13, v19",
    ]
def w_dma(slot):
    g = []
    for i in range(9):
        grp = []
        if i % 4 == 0:
            g.append(["s_add_u32 m0, s33, %d" % (slot * SLOT + (i // 4) * 4096)])
        g.append(["buffer_load_dwordx4 v%d, s[16:19], s34 offen offset:%d lds" % (2 + i, (i % 4) * 1024)])
    g.append(["s_add_u32 s34, s34, 18432"])
    return g

def emit_step(mf, fill):
    for i, m in enumerate(mf):
        for f in fill.get(i, []):
            e(f)
        e(m)
    for f in fill.get(len(mf), []):
        e(f)

def add(fill, slot, ins):
    if ins is None: return
    fill.setdefault(slot, []).append(ins)

ORDER = [(u, m) for u in [4, 5, 6, 7, 0, 1, 2, 3] for m in range(9)]

def step(s_par, dma=True, vm=9):
    b = s_par; nb = 1 - b
    mf = [mfma(u, m, b) for (u, m) in ORDER]
    fill = {}
    add(fill, 0, "s_waitcnt vmcnt(%d) lgkmcnt(0)" % vm)
    for i, r in enumerate(w_reads(nb, nb)):
        if "--nowread" not in sys.argv: add(fill, 1 + i, r)
    xa = x_addr_update()
    for i, r in enumerate(xa):
        add(fill, 2 + i, r)
    for i, r in enumerate(x_reads(nb)):
        if "--noxread" not in sys.argv: add(fill, 19 + i, r)
    if "--gload" in sys.argv and dma:
        pos = 31
        for i in range(9):
            d = wf(nb, i)
            add(fill, 1 + 4 * i, "buffer_load_dwordx4 v[%d:%d], v39, s[16:19], s34 offen offset:%d" % (d, d + 3, (i % 4) * 1024))
            if i % 4 == 3: add(fill, 2 + 4 * i, "s_add_u32 s34, s34, 4096")
        add(fill, 40, "s_add_u32 s34, s34, %d" % (18432 - 8192))
        dma = False
    if "--nodma" in sys.argv: dma = False
    if dma:
        add(fill, 30, "s_waitcnt lgkmcnt(8)")
        pos = 31
        for grp in w_dma(nb):
            for ins in grp:
                add(fill, pos, ins)
            pos += 1 if grp[0].startswith("s_") else 4
        assert pos <= 72, pos
    emit_step(mf, fill)

out.append(HDR + '.amdgcn_target "amdgcn-amd-amdhsa--gfx950"\n.text\n.globl %s_kernel\n.p2align 8\n.type %s_kernel,@function' % (NAME, NAME))
lab(NAME + "_kernel")
e("s_cmp_ge_u32 s2, 250")
e("s_cbranch_scc1 L_end")
stamp()
e("s_load_dwordx8 s[4:11], s[0:1], 0")
e("v_lshrrev_b32 v1, 6, v0")
e("v_and_b32 v0, 63, v0")
e("s_nop 0")
e("v_readfirstlane_b32 s28, v1")
c("tile decode")
e("s_cmp_ge_u32 s2, 125")
e("s_cselect_b32 s32, 1, 0")
e("s_mul_i32 s3, s32, 125")
e("s_sub_u32 s31, s2, s3")
e("s_lshl_b32 s31, s31, 7")
e("s_and_b32 s29, s28, 1")
e("s_lshr_b32 s30, s28, 1")
e("s_mul_i32 s33, s28, %d" % RING)
e("s_mul_i32 s34, s30, %d" % (70 * 18432))
c("lane decode: j=l&15 (v22) g=l>>4 (v23)")
e("v_and_b32 v22, 15, v0")
e("v_lshrrev_b32 v23, 4, v0")
e("s_waitcnt lgkmcnt(0)")
c("SRDs")
e("s_mul_i32 s3, s32, 4608000")
e("s_add_u32 s12, s4, s3")
e("s_addc_u32 s13, s5, 0")
e("s_and_b32 s13, s13, 0xffff")
e("s_mov_b32 s14, 4608000")
e("s_mov_b32 s15, 0x20000")
e("s_mov_b32 s16, s6")
e("s_and_b32 s17, s7, 0xffff")
e("s_mov_b32 s18, 2571264")
e("s_mov_b32 s19, 0x20000")
e("s_mov_b32 s20, s8")
e("s_and_b32 s21, s9, 0xffff")
e("s_mov_b32 s22, 41472")
e("s_mov_b32 s23, 0x20000")
e("s_mov_b32 s24, s10")
e("s_and_b32 s25, s11, 0xffff")
e("s_mov_b32 s26, 9216000")
e("s_mov_b32 s27, 0x20000")
c("X tile DMA: piece j=4i+w ; voff=(t0-60)*288+1024j+16L")
e("s_mul_i32 s3, s31, 288")
e("s_sub_u32 s3, s3, 17280")
e("s_lshl_b32 s40, s28, 10")
e("s_add_u32 s3, s3, s40")
e("v_lshlrev_b32 v24, 4, v0")
e("v_add_u32 v25, s3, v24")
e("s_add_u32 s41, s40, %d" % XB)
e("s_mov_b32 m0, s41")
e("s_cmp_lg_u32 s28, 0")
e("s_cbranch_scc1 L_skipx")
c("wave 0 loads the extra piece 52")
e("v_add_u32 v26, %d, v25" % (13 * 4096))
e("s_add_u32 m0, s41, %d" % (13 * 4096))
e("s_nop 0")
e("buffer_load_dwordx4 v26, s[12:15], 0 offen lds")
e("s_mov_b32 m0, s41")
lab("L_skipx")
for i in range(13):
    e("s_nop 0")
    e("buffer_load_dwordx4 v25, s[12:15], 0 offen lds")
    if i < 12:
        e("v_add_u32 v25, 4096, v25")
        e("s_add_u32 m0, m0, 4096")
c("W DMA voffsets v2..v10")
e("s_mul_i32 s3, s29, 288")
e("s_movk_i32 s42, 3641")
for i in range(9):
    e("v_add_u32 v26, %d, v0" % (64 * i))
    e("v_mul_lo_u32 v27, v26, s42")
    e("v_lshrrev_b32 v27, 16, v27")
    e("v_mul_u32_u24 v28, 18, v27")
    e("v_sub_u32 v28, v26, v28")
    e("v_and_b32 v29, 19, v27")
    e("v_lshrrev_b32 v30, 1, v27")
    e("v_and_b32 v30, 4, v30")
    e("v_lshlrev_b32 v31, 1, v27")
    e("v_and_b32 v31, 8, v31")
    e("v_or3_b32 v29, v29, v30, v31")
    e("v_mul_u32_u24 v29, 576, v29")
    e("v_lshl_add_u32 v29, v28, 4, v29")
    e("v_add_u32 v29, s3, v29")
    e("v_subrev_u32 v%d, %d, v29" % (2 + i, (i % 4) * 1024))
for slot in range(2):
    for grp in w_dma(slot):
        for ins in grp:
            e(ins)
            if ins.startswith("s_add_u32 m0"):
                e("s_nop 0")
c("W tr-read base v11 = ring + (16(g>>1)+4(g&1)+r)*288 + c*8")
e("v_lshrrev_b32 v26, 5, v0")
e("v_lshlrev_b32 v26, 4, v26")
e("v_bfe_u32 v27, v0, 2, 3")
e("v_add_u32 v26, v26, v27")
e("v_mul_u32_u24 v26, 288, v26")
e("v_and_b32 v27, 3, v0")
e("v_lshl_add_u32 v26, v27, 3, v26")
e("v_add_u32 v11, s33, v26")
c("X addresses")
e("s_mul_i32 s3, s30, 160")
e("v_lshlrev_b32 v13, 4, v23")
e("v_add_u32 v13, s3, v13")
e("s_mul_i32 s3, s30, 30")
e("s_sub_u32 s3, 60, s3")
e("v_add_u32 v26, s3, v22")
e("v_mul_u32_u24 v26, 288, v26")
e("v_add_u32 v12, v26, v13")
e("s_lshl_b32 s3, s30, 2")
e("s_lshl_b32 s40, s29, 1")
e("s_or_b32 s43, s3, s40")
for i in range(4):
    e("s_xor_b32 s3, s43, %d" % (2 * i))
    e("s_mul_i32 s3, s3, 4608")
    e("s_add_u32 s3, s3, %d" % XB)
    e("v_add_u32 v%d, s3, v12" % (14 + i))
e("s_mul_i32 s3, s29, 9216")
e("v_add_u32 v39, s3, v24")
e("v_mov_b32 v20, -800")
e("v_mov_b32 v21, 288")
c("zero accumulators")
for r in range(112, 256):
    e("v_mov_b32 v%d, 0" % r)
for r in range(144):
    e("v_accvgpr_write_b32 a%d, 0" % r)
e("s_waitcnt vmcnt(9)")
e("s_barrier")
stamp()
for r in w_reads(0, 0): e(r)
for r in x_reads(0): e(r)
e("s_waitcnt lgkmcnt(8)")
for grp in w_dma(0):
    for ins in grp:
        e(ins)
        if ins.startswith("s_add_u32 m0"):
            e("s_nop 0")
e("s_mov_b32 s35, 33")
stamp()
out.append(".p2align 6")
lab("L_loop")
step(0)
step(1)
e("s_sub_u32 s35, s35, 1")
e("s_cmp_lg_u32 s35, 0")
e("s_cbranch_scc1 L_loop")
c("step 66, 67")
step(0)
step(1, dma=False)
stamp()
c("tail")
GIVE = [(u, m) for u in [4, 5, 6, 7] for m in range(9)]
KEEP = [(u, m) for u in [0, 1, 2, 3] for m in range(9)]
fill = {}
add(fill, 0, "s_waitcnt vmcnt(0) lgkmcnt(0)")
for i, r in enumerate(w_reads(1, 1)): add(fill, 1 + i, r)
for i, r in enumerate(x_addr_update()): add(fill, 2 + i, r)
for i, r in enumerate(x_reads(1)): add(fill, 19 + i, r)
c("exchange addresses")
add(fill, 28, "s_mul_i32 s44, s28, %d" % REG)
add(fill, 28, "s_xor_b32 s45, s28, 2")
add(fill, 29, "s_mul_i32 s46, s45, %d" % REG)
add(fill, 29, "s_xor_b32 s47, s28, 3")
add(fill, 30, "s_mul_i32 s47, s47, %d" % REG)
add(fill, 31, "v_add_u32 v25, s44, v24")
add(fill, 32, "v_add_u32 v26, s46, v24")
add(fill, 33, "v_add_u32 v27, s47, v24")
emit_step([mfma(u, m, 0) for (u, m) in GIVE], fill)
e("s_waitcnt lgkmcnt(0)")
e("s_cmp_eq_u32 s30, 0")
e("s_cbranch_scc1 L_nozero")
e("s_mov_b32 exec_lo, 0")
for r in range(32):
    e("v_accvgpr_write_b32 a%d, 0" % (xf(1, 0) + r))
e("s_mov_b64 exec, -1")
e("s_nop 1")
lab("L_nozero")
e("s_barrier")
emit_step([mfma(u, m, 1) for (u, m) in GIVE], {})
mf = [mfma(u, m, 0) for (u, m) in KEEP] + [mfma(u, m, 1) for (u, m) in KEEP]
fill = {}
for t in range(36):
    add(fill, 2 * t, "ds_write_b128 v25, a[%d:%d] offset:%d" % (4 * t, 4 * t + 3, 1024 * t))
emit_step(mf, fill)
e("s_waitcnt lgkmcnt(0)")
e("s_barrier")
stamp()
c("activation constants: s[50:51]=s1, s[52:53]=1.0, s[54:55]=s2, v[28:29]=s3")
e("s_cmp_eq_u32 s29, 0")
e("s_mov_b32 s51, 0xbfb8aa3b")
e("s_cselect_b32 s50, 0x4038aa3b, s51")
e("s_mov_b32 s51, s50")
e("s_mov_b32 s52, 1.0")
e("s_mov_b32 s53, 1.0")
e("s_cselect_b32 s54, -2.0, 1.0")
e("s_mov_b32 s55, s54")
e("s_cselect_b32 s56, 1.0, 0")
e("v_mov_b32 v28, s56")
e("v_mov_b32 v29, s56")
c("stage1 reads A: tiles u=0,1")
for t in range(18):
    e("ds_read_b128 v[%d:%d], v26 offset:%d" % (40 + 4 * t, 43 + 4 * t, 1024 * t))
    if t == 14: pass
for t in range(18):
    e("s_waitcnt lgkmcnt(%d)" % min(15, 17 - t))
    for h in range(2):
        a = 112 + 4 * t + 2 * h; s = 40 + 4 * t + 2 * h
        e("v_pk_add_f32 v[%d:%d], v[%d:%d], v[%d:%d]" % (a, a + 1, a, a + 1, s, s + 1))
c("stage1 reads B: tiles u=2,3")
for t in range(18):
    e("ds_read_b128 v[%d:%d], v26 offset:%d" % (40 + 4 * t, 43 + 4 * t, 1024 * (18 + t)))
c("w_o DMA: block s45 (<3)")
e("s_cmp_ge_u32 s45, 3")
e("s_cbranch_scc1 L_nowo")
e("s_mul_i32 s3, s45, 13824")
e("v_add_u32 v30, s3, v24")
e("s_mov_b32 m0, s46")
for i in range(14):
    if i % 4 == 0 and i > 0:
        e("s_add_u32 m0, m0, 4096")
        e("v_add_u32 v30, 4096, v30")
    else:
        e("s_nop 0")
    e("buffer_load_dwordx4 v30, s[20:23], 0 offen offset:%d lds" % ((i % 4) * 1024))
lab("L_nowo")

def act_tile(a):
    r = []
    for h in (0, 2):
        r.append("v_pk_mul_f32 v[%d:%d], v[%d:%d], s[50:51]" % (a + h, a + h + 1, a + h, a + h + 1))
    for k in range(4):
        r.append("v_exp_f32 v%d, v%d" % (a + k, a + k))
    r.append("s_nop 0")
    for h in (0, 2):
        r.append("v_pk_add_f32 v[%d:%d], v[%d:%d], s[52:53]" % (a + h, a + h + 1, a + h, a + h + 1))
    for k in range(4):
        r.append("v_rcp_f32 v%d, v%d" % (a + k, a + k))
    r.append("s_nop 0")
    for h in (0, 2):
        r.append("v_pk_fma_f32 v[%d:%d], v[%d:%d], s[54:55], v[28:29]" % (a + h, a + h + 1, a + h, a + h + 1))
    return r
for t in range(18):
    e("s_waitcnt lgkmcnt(%d)" % min(15, 17 - t))
    for h in range(2):
        a = 184 + 4 * t + 2 * h; s = 40 + 4 * t + 2 * h
        e("v_pk_add_f32 v[%d:%d], v[%d:%d], v[%d:%d]" % (a, a + 1, a, a + 1, s, s + 1))
for t in range(18):
    a = 184 + 4 * t
    for r in act_tile(a): e(r)
    e("ds_write_b128 v26, v[%d:%d] offset:%d" % (a, a + 3, 1024 * (18 + t)))
for t in range(18):
    for r in act_tile(112 + 4 * t): e(r)
c("w_o tr-read bases: v30 = (4g+r)*288 + 16c ; v31 = v30+73728 ; v32 = (4g+r)*288+8c+256 ; v33 = v32+73728")
e("v_lshrrev_b32 v34, 2, v0")
e("v_mul_u32_u24 v34, 288, v34")
e("v_and_b32 v35, 3, v0")
e("v_lshl_add_u32 v30, v35, 4, v34")
e("v_add_u32 v31, %d, v30" % (2 * REG))
e("v_lshl_add_u32 v32, v35, 3, v34")
e("v_add_u32 v32, 256, v32")
e("v_add_u32 v33, %d, v32" % (2 * REG))
c("output voffsets: v36 (dwordx4), v37 (dwordx2)")
e("s_mul_i32 s3, s32, 16000")
e("s_add_u32 s3, s3, s31")
e("s_lshl_b32 s40, s43, 4")
e("s_add_u32 s3, s3, s40")
e("v_add_u32 v34, s3, v22")
e("s_movk_i32 s40, 288")
e("v_mul_lo_u32 v34, v34, s40")
e("v_lshl_add_u32 v36, v23, 4, v34")
e("v_lshl_add_u32 v37, v23, 3, v34")
e("s_movk_i32 s48, 4608")
e("s_waitcnt vmcnt(0) lgkmcnt(0)")
e("s_barrier")
stamp()
c("stage2 reads")
for t in range(18):
    e("ds_read_b128 v[%d:%d], v27 offset:%d" % (184 + 4 * t, 187 + 4 * t, 1024 * (18 + t)))
for t in range(18):
    e("s_waitcnt lgkmcnt(%d)" % min(15, 17 - t))
    a = 112 + 4 * t; p = 184 + 4 * t
    for h in (0, 2):
        e("v_pk_mul_f32 v[%d:%d], v[%d:%d], v[%d:%d]" % (a + h, a + h + 1, a + h, a + h + 1, p + h, p + h + 1))
    z = 184 + 2 * t
    e("v_cvt_pk_bf16_f32 v%d, v%d, v%d" % (z, a, a + 1))
    e("v_cvt_pk_bf16_f32 v%d, v%d, v%d" % (z + 1, a + 2, a + 3))
c("GEMM2")
def wo_read(n, grp, dst):
    reg = grp // 3
    if n < 8:
        base = 30 if reg < 2 else 31
        off = (reg % 2) * REG if reg < 2 else 0
        off += (grp % 3) * 4608 + 64 * (n // 2) + 8 * (n % 2)
    else:
        base = 32 if reg < 2 else 33
        off = (reg % 2) * REG if reg < 2 else 0
        off += (grp % 3) * 4608
    return "ds_read_b64_tr_b16 a[%d:%d], v%d offset:%d" % (dst, dst + 1, base, off)
def woreg(n, grp): return n * 18 + 2 * grp
def acc2(u, n): return 40 + (u * 9 + n) * 4
for n in range(9):
    for grp in range(9):
        e(wo_read(n, grp, woreg(n, grp)))
    e("s_waitcnt lgkmcnt(0)")
    for p in range(5):
        for u in range(2):
            d = acc2(u, n); z = 184 + 18 * u + 4 * p; w = woreg(n, 2 * p)
            cs = "0" if p == 0 else "v[%d:%d]" % (d, d + 3)
            if p < 4:
                e("v_mfma_f32_16x16x32_bf16 v[%d:%d], a[%d:%d], v[%d:%d], %s" % (d, d + 3, w, w + 3, z, z + 3, cs))
            else:
                e("v_mfma_f32_16x16x16_bf16 v[%d:%d], a[%d:%d], v[%d:%d], %s" % (d, d + 3, w, w + 1, z, z + 1, cs))
e("s_nop 15")
c("convert + store")
for u in range(2):
    so = "0" if u == 0 else "s48"
    for P in range(4):
        o = 112 + (u * 5 + P) * 4
        for ee in range(2):
            d = acc2(u, 2 * P + ee)
            e("v_cvt_pk_bf16_f32 v%d, v%d, v%d" % (o + 2 * ee, d, d + 1))
            e("v_cvt_pk_bf16_f32 v%d, v%d, v%d" % (o + 2 * ee + 1, d + 2, d + 3))
        e("buffer_store_dwordx4 v[%d:%d], v36, s[24:27], %s offen offset:%d" % (o, o + 3, so, 64 * P))
    o = 112 + (u * 5 + 4) * 4
    d = acc2(u, 8)
    e("v_cvt_pk_bf16_f32 v%d, v%d, v%d" % (o, d, d + 1))
    e("v_cvt_pk_bf16_f32 v%d, v%d, v%d" % (o + 1, d + 2, d + 3))
    e("buffer_store_dwordx2 v[%d:%d], v37, s[24:27], %s offen offset:256" % (o, o + 1, so))
if STAMPS:
    stamp()
    e("s_waitcnt vmcnt(0)")
    stamp()
    stamp_flush()
lab("L_end")
e("s_endpgm")
out.append(""".section .rodata,"a"
.p2align 6
.amdhsa_kernel %s_kernel
  .amdhsa_next_free_vgpr 512
  .amdhsa_next_free_sgpr 102
  .amdhsa_accum_offset 256
  .amdhsa_group_segment_fixed_size 0
  .amdhsa_kernarg_size 48
  .amdhsa_user_sgpr_count 2
  .amdhsa_user_sgpr_kernarg_segment_ptr 1
  .amdhsa_system_sgpr_workgroup_id_x 1
.end_amdhsa_kernel""" % NAME)
args = [a for a in sys.argv[1:] if not a.startswith("--")]
open(args[0] if args else "cdna_kernels/%s.s" % NAME, "w").write("\n".join(out) + "\n")
```

```python
import re
REG = re.compile(r'\b([vas])(?:\[(\d+):(\d+)\]|(\d+)\b)')
def regs(tok):
    r = set()
    for m in REG.finditer(tok):
        k = m.group(1)
        if m.group(2) is not None:
            for i in range(int(m.group(2)), int(m.group(3)) + 1): r.add((k, i))
        else:
            r.add((k, int(m.group(4))))
    if 'vcc' in tok: r.add(('vcc', 0))
    return r
TRANS = ('v_exp_f32', 'v_rcp_f32', 'v_log_f32', 'v_rsq_f32', 'v_sqrt_f32')
def parse(line):
    line = line.split(';')[0].strip()
    if not line or line.endswith(':') or line.startswith('.'): return None
    op, _, rest = line.partition(' ')
    ops = [o.strip() for o in rest.split(',')] if rest else []
    d = dict(op=op, line=line, w=set(), r=set(), cls='other', ws=1, srcc=set(), ab=set())
    if op == 's_nop':
        d['ws'] = int(ops[0], 0) + 1
    elif op.startswith('v_mfma'):
        d['cls'] = 'mfma'; d['w'] = regs(ops[0]); d['ab'] = regs(ops[1]) | regs(ops[2]); d['srcc'] = regs(ops[3]); d['r'] = d['ab'] | d['srcc']
    elif op.startswith('v_cmp'):
        d['cls'] = 'valu'; d['w'] = regs(ops[0]); d['r'] = set().union(*[regs(o) for o in ops[1:]])
    elif op.startswith('v_'):
        d['cls'] = 'valu'; d['w'] = regs(ops[0]); d['r'] = set().union(*[regs(o) for o in ops[1:]]) if len(ops) > 1 else set()
        if op.startswith('v_permlane'): d['w'] |= regs(ops[1]); d['r'] |= regs(ops[0])
        if op.startswith('v_fmac'): d['r'] |= d['w']
    elif op.startswith('ds_read'):
        d['cls'] = 'mem'; d['w'] = regs(ops[0]); d['r'] = regs(ops[1])
    elif op.startswith('ds_write'):
        d['cls'] = 'mem'; d['r'] = set().union(*[regs(o) for o in ops])
    elif op.startswith('buffer_load') or op.startswith('global_load'):
        d['cls'] = 'mem'
        if line.rstrip().endswith('lds') or ' lds' in line:
            d['r'] = set().union(*[regs(o) for o in ops])
        else:
            d['w'] = regs(ops[0]); d['r'] = set().union(*[regs(o) for o in ops[1:]])
    elif op.startswith('buffer_') or op.startswith('global_'):
        d['cls'] = 'mem'; d['r'] = set().union(*[regs(o) for o in ops]); d['store'] = True
    elif op.startswith('s_'):
        d['cls'] = 'salu'
        if ops and not op.startswith('s_cmp') and not op.startswith('s_waitcnt') and not op.startswith('s_cbranch') and not op.startswith('s_branch'):
            d['w'] = regs(ops[0]) | ({('m0', 0)} if ops[0] == 'm0' else set())
            d['r'] = set().union(*[regs(o) for o in ops[1:]]) if len(ops) > 1 else set()
    return d
def check(lines):
    ins = [p for p in (parse(l) for l in lines) if p]
    errs = []
    for i, c in enumerate(ins):
        dist = 0
        for j in range(i - 1, max(-1, i - 24), -1):
            p = ins[j]
            need = 0
            if p['cls'] == 'mfma':
                if c['cls'] in ('valu', 'mem'):
                    if p['w'] & (c['r'] | c['w']): need = 8
                    if c['cls'] == 'valu' and (p['srcc'] & c['w']): need = max(need, 3)
                elif c['cls'] == 'mfma':
                    if p['w'] & c['ab']: need = 8
                    if (p['w'] & c['srcc']) and (p['w'] != c['srcc'] or p['op'] != c['op']): need = max(need, 6)
            elif p['cls'] == 'valu':
                vw = {x for x in p['w'] if x[0] in 'va'}
                sw = {x for x in p['w'] if x[0] in ('s', 'vcc')}
                if c['cls'] == 'mfma' and (vw & c['r']): need = 2
                if c['cls'] == 'valu':
                    if p['op'] in TRANS and c['op'] not in TRANS and (vw & c['r']): need = max(need, 1)
                    if sw & c['r']: need = max(need, 2)
                    if c['op'].startswith('v_readfirstlane') and (vw & c['r']): need = max(need, 1)
                    if c['op'].startswith('v_permlane') and (vw & c['r']): need = max(need, 2)
                if c['cls'] == 'mem' and (sw & c['r']): need = max(need, 5)
            elif p['cls'] == 'salu':
                if ('m0', 0) in p['w'] and c['cls'] == 'mem' and ' lds' in c['line']: need = 1
            elif p['cls'] == 'mem' and p.get('store') and ('x4' in p['op'] or 'x3' in p['op']):
                if c['cls'] == 'valu' and (c['w'] & p['r']): need = 2
            if need > dist:
                errs.append("HAZARD need %d have %d: [%s] -> [%s]" % (need, dist, p['line'], c['line']))
            dist += p['ws']
            if dist >= 12: break
    return errs
if __name__ == "__main__":
    import sys
    e = check(open(sys.argv[1]).read().split('\n'))
    print("\n".join(e[:50])); print(len(e), "hazards")
```

```python
WS_W = 0
WS_WO = 0x400000
WS_WO8 = WS_WO + 36864
WS_FLAG = 0x420000
WS_Z = 0x440000
WS_END = WS_Z + 252 * 18432
NPREP = 288 + 18

def gen_prep():
    o = []
    e = lambda s: o.append(s)
    e(".p2align 8")
    e(".globl prep_kernel")
    e(".type prep_kernel,@function")
    e("prep_kernel:")
    e("s_cmp_ge_u32 s2, %d" % NPREP)
    e("s_cbranch_scc1 LP_end")
    e("s_load_dwordx4 s[4:7], s[0:1], 8")
    e("s_load_dwordx2 s[8:9], s[0:1], 40")
    e("s_cmp_ge_u32 s2, 288")
    e("s_cbranch_scc1 LP_wo")
    e("s_mul_i32 s3, s2, 3641")
    e("s_lshr_b32 s20, s3, 16")
    e("s_mul_i32 s3, s20, 18")
    e("s_sub_u32 s21, s2, s3")
    e("s_mul_i32 s22, s20, 165888")
    e("s_mul_i32 s3, s21, 4608")
    e("s_add_u32 s22, s22, s3")
    e("s_add_u32 s23, s22, 82944")
    e("s_and_b32 s24, s20, 7")
    e("s_lshr_b32 s25, s20, 3")
    e("s_mul_i32 s3, s24, 18")
    e("s_add_u32 s3, s3, s21")
    e("s_lshr_b32 s26, s3, 2")
    e("s_and_b32 s27, s3, 3")
    e("s_lshr_b32 s28, s24, 2")
    e("s_mul_i32 s3, s28, 36")
    e("s_add_u32 s3, s3, s26")
    e("s_mul_i32 s3, s3, 18432")
    e("s_mul_i32 s29, s25, 9216")
    e("s_add_u32 s3, s3, s29")
    e("s_lshl_b32 s29, s27, 8")
    e("s_add_u32 s30, s3, s29")
    e("s_cmp_eq_u32 s28, 0")
    e("s_cselect_b32 s31, 2, 1")
    e("s_cselect_b32 s32, 1, 2")
    e("s_mul_i32 s31, s31, %d" % (18 * 18432))
    e("s_mul_i32 s32, s32, %d" % (18 * 18432))
    e("s_add_u32 s31, s31, s30")
    e("s_add_u32 s32, s32, s30")
    e("v_lshlrev_b32 v1, 2, v0")
    e("v_cmp_le_u32 vcc, 72, v0")
    e("s_nop 1")
    e("v_cndmask_b32 v2, 0, 1, vcc")
    e("v_mul_u32_u24 v3, 72, v2")
    e("v_sub_u32 v3, v0, v3")
    e("v_cmp_le_u32 vcc, 36, v3")
    e("s_nop 1")
    e("v_cndmask_b32 v4, 0, 1, vcc")
    e("v_mul_u32_u24 v5, 36, v4")
    e("v_sub_u32 v3, v3, v5")
    e("v_lshrrev_b32 v5, 2, v3")
    e("v_and_b32 v3, 3, v3")
    e("v_lshlrev_b32 v3, 6, v3")
    e("v_lshl_add_u32 v3, v2, 5, v3")
    e("v_lshl_add_u32 v3, v5, 10, v3")
    e("v_mul_u32_u24 v4, 1990656, v4")
    e("v_add_u32 v3, v3, v4")
    e("s_waitcnt lgkmcnt(0)")
    e("s_mov_b32 s12, s4"); e("s_and_b32 s13, s5, 0xffff"); e("s_mov_b32 s14, 2571264"); e("s_mov_b32 s15, 0x20000")
    e("s_mov_b32 s16, s8"); e("s_and_b32 s17, s9, 0xffff"); e("s_mov_b32 s18, %d" % WS_END); e("s_mov_b32 s19, 0x20000")
    e("v_cmp_gt_u32 vcc, 144, v0")
    e("s_and_saveexec_b64 s[34:35], vcc")
    e("s_cbranch_execz LP_end")
    for r in range(8):
        e("buffer_load_dword v%d, v1, s[12:15], s22 offen offset:%d" % (8 + r, r * 576))
    for r in range(8):
        e("buffer_load_dword v%d, v1, s[12:15], s23 offen offset:%d" % (16 + r, r * 576))
    e("s_mov_b32 s36, 0x05040100")
    e("s_mov_b32 s37, 0x07060302")
    e("s_mov_b32 s38, 0xffff0000")
    e("s_waitcnt vmcnt(8)")
    for h in range(2):
        for i in range(4):
            e("v_perm_b32 v%d, v%d, v%d, s%d" % (24 + 4 * h + i, 8 + 2 * i + 1, 8 + 2 * i, 36 + h))
    e("buffer_store_dwordx4 v[24:27], v3, s[16:19], s31 offen")
    e("buffer_store_dwordx4 v[28:31], v3, s[16:19], s31 offen offset:16")
    e("s_waitcnt vmcnt(2)")
    for h in range(2):
        for i in range(4):
            e("v_perm_b32 v%d, v%d, v%d, s%d" % (32 + 4 * h + i, 16 + 2 * i + 1, 16 + 2 * i, 36 + h))
    e("buffer_store_dwordx4 v[32:35], v3, s[16:19], s32 offen")
    e("buffer_store_dwordx4 v[36:39], v3, s[16:19], s32 offen offset:16")
    for r in range(8):
        e("v_lshlrev_b32 v40, 16, v%d" % (8 + r))
        e("v_lshlrev_b32 v41, 16, v%d" % (16 + r))
        e("v_add_f32 v%d, v40, v41" % (48 + r))
        e("v_and_b32 v40, s38, v%d" % (8 + r))
        e("v_and_b32 v41, s38, v%d" % (16 + r))
        e("v_add_f32 v%d, v40, v41" % (56 + r))
    for h in range(2):
        for i in range(4):
            e("v_cvt_pk_bf16_f32 v%d, v%d, v%d" % (64 + 4 * h + i, 48 + 8 * h + 2 * i, 48 + 8 * h + 2 * i + 1))
    e("buffer_store_dwordx4 v[64:67], v3, s[16:19], s30 offen")
    e("buffer_store_dwordx4 v[68:71], v3, s[16:19], s30 offen offset:16")
    e("s_cmp_ge_u32 s2, 252")
    e("s_cbranch_scc1 LP_end")
    e("v_cmp_eq_u32 vcc, 0, v0")
    e("s_and_saveexec_b64 s[34:35], vcc")
    e("s_cbranch_execz LP_end")
    e("s_lshl_b32 s3, s2, 7")
    e("s_add_u32 s3, s3, %d" % WS_FLAG)
    e("v_mov_b32 v4, 0")
    e("buffer_store_dword v4, v4, s[16:19], s3 offen")
    e("s_branch LP_end")
    e("LP_wo:")
    e("v_lshrrev_b32 v1, 6, v0")
    e("v_and_b32 v0, 63, v0")
    e("s_sub_u32 s3, s2, 288")
    e("v_readfirstlane_b32 s20, v1")
    e("s_mul_i32 s3, s3, 3")
    e("s_add_u32 s20, s20, s3")
    e("v_and_b32 v1, 15, v0")
    e("v_lshrrev_b32 v2, 4, v0")
    e("s_waitcnt lgkmcnt(0)")
    e("s_mov_b32 s12, s6"); e("s_and_b32 s13, s7, 0xffff"); e("s_mov_b32 s14, 41472"); e("s_mov_b32 s15, 0x20000")
    e("s_mov_b32 s16, s8"); e("s_and_b32 s17, s9, 0xffff"); e("s_mov_b32 s18, %d" % WS_END); e("s_mov_b32 s19, 0x20000")
    e("s_lshr_b32 s21, s20, 2")
    e("s_sub_u32 s22, s20, 36")
    e("s_cmp_ge_i32 s22, 9")
    e("s_cselect_b32 s23, 1, 0")
    e("s_mul_i32 s3, s23, 9")
    e("s_sub_u32 s24, s22, s3")
    e("s_cmp_lt_u32 s20, 36")
    e("s_cselect_b32 s21, s21, s24")
    e("v_lshrrev_b32 v3, 2, v1")
    e("v_lshlrev_b32 v3, 4, v3")
    e("v_and_b32 v4, 3, v1")
    e("v_lshl_add_u32 v3, v4, 1, v3")
    e("s_lshr_b32 s3, s21, 1")
    e("s_lshl_b32 s3, s3, 6")
    e("s_and_b32 s25, s21, 1")
    e("s_lshl_b32 s25, s25, 3")
    e("s_add_u32 s3, s3, s25")
    e("v_lshlrev_b32 v4, 1, v1")
    e("s_cmp_eq_u32 s21, 8")
    e("s_cselect_b64 vcc, -1, 0")
    e("v_cndmask_b32 v3, v3, v4, vcc")
    e("v_add_u32 v3, s3, v3")
    e("v_mul_u32_u24 v4, 576, v2")
    e("v_add_u32 v3, v3, v4")
    e("s_cmp_ge_u32 s20, 36")
    e("s_cbranch_scc1 LP_wo8")
    e("s_and_b32 s3, s20, 3")
    e("s_lshr_b32 s25, s3, 1")
    e("s_mul_i32 s25, s25, %d" % (72 * 288))
    e("s_and_b32 s26, s3, 1")
    e("s_mul_i32 s26, s26, %d" % (32 * 288))
    e("s_add_u32 s25, s25, s26")
    for i in range(4):
        e("buffer_load_ushort v%d, v3, s[12:15], s25 offen" % (8 + i))
        e("buffer_load_ushort v%d, v3, s[12:15], s25 offen offset:288" % (12 + i))
        e("s_add_u32 s25, s25, %d" % (8 * 288))
    e("v_lshlrev_b32 v5, 4, v0")
    e("s_lshl_b32 s3, s20, 10")
    e("s_add_u32 s3, s3, %d" % WS_WO)
    e("s_waitcnt vmcnt(0)")
    for i in range(4):
        e("v_lshl_or_b32 v%d, v%d, 16, v%d" % (8 + i, 12 + i, 8 + i))
    e("buffer_store_dwordx4 v[8:11], v5, s[16:19], s3 offen")
    e("s_branch LP_end")
    e("LP_wo8:")
    for b2 in range(2):
        e("s_xor_b32 s25, s23, %d" % b2)
        e("s_mul_i32 s25, s25, %d" % (72 * 288))
        e("s_add_u32 s25, s25, %d" % (64 * 288))
        e("buffer_load_ushort v%d, v3, s[12:15], s25 offen" % (8 + b2))
        e("buffer_load_ushort v%d, v3, s[12:15], s25 offen offset:288" % (12 + b2))
    e("v_lshlrev_b32 v5, 3, v0")
    e("s_lshl_b32 s3, s22, 9")
    e("s_add_u32 s3, s3, %d" % WS_WO8)
    e("s_waitcnt vmcnt(0)")
    for i in range(2):
        e("v_lshl_or_b32 v%d, v%d, 16, v%d" % (8 + i, 12 + i, 8 + i))
    e("buffer_store_dwordx2 v[8:9], v5, s[16:19], s3 offen")
    e("LP_end:")
    e("s_endpgm")
    kd = """.amdhsa_kernel prep_kernel
  .amdhsa_next_free_vgpr 72
  .amdhsa_next_free_sgpr 48
  .amdhsa_accum_offset 72
  .amdhsa_group_segment_fixed_size 0
  .amdhsa_kernarg_size 48
  .amdhsa_user_sgpr_count 2
  .amdhsa_user_sgpr_kernarg_segment_ptr 1
  .amdhsa_system_sgpr_workgroup_id_x 1
.end_amdhsa_kernel"""
    return o, kd
```

```python
import sys
from prep import *
import hz

NAME = "standalone__autoregressive_conv_wavenet__speech"
STAMPS = "--stamps" in sys.argv
HDR = """; Kernarg layout for this problem (48 bytes, ptrs only, base s[0:1]):
;   offset   0: d_in[0] x  shape=(2, 16000, 144) dtype=bfloat16 strides=(4608000, 288, 2) contiguous=True
;   offset   8: d_in[1] w  shape=(31, 144, 288) dtype=bfloat16 strides=(82944, 576, 2) contiguous=True
;   offset  16: d_in[2] w_o  shape=(144, 144) dtype=bfloat16 strides=(288, 2) contiguous=True
;   offset  24: d_out     shape=(2, 16000, 144) dtype=bfloat16 (2 bytes/elem)
;   offset  32: d_debug   256 bytes
;   offset  40: d_ws      268435456 bytes workspace
; @launch kernel=prep_kernel grid=(%d,1,1) block=(192,1,1) lds=0
; @launch kernel=%s_kernel grid=(252,1,1) block=(256,1,1) lds=163840
""" % (NPREP, NAME)

out = []
def e(s): out.append(s)
def lab(s): out.append(s + ":")
def c(s): out.append("; " + s)

ARR = 49152
WS_ST = 0x1000000
nst = [0]
def stamp():
    if not STAMPS: return
    r = 64 + 4 * nst[0]
    e("s_memtime s[%d:%d]" % (r, r + 1))
    e("s_memrealtime s[%d:%d]" % (r + 2, r + 3))
    e("s_waitcnt lgkmcnt(0)")
    nst[0] += 1
def stamp_flush(n):
    e("s_lshl_b32 s3, s2, 2")
    e("s_add_u32 s3, s3, s28")
    e("s_mul_i32 s3, s3, %d" % (n * 16))
    e("s_add_u32 s3, s3, %d" % WS_ST)
    e("s_add_u32 s4, s60, s3")
    e("s_addc_u32 s5, s61, 0")
    e("v_mov_b32 v4, 0")
    for i in range(n):
        r = 64 + 4 * i
        for k in range(4):
            e("v_mov_b32 v%d, s%d" % (8 + k, r + k))
        e("global_store_dwordx4 v4, v[8:11], s[4:5] offset:%d" % (16 * i))
        e("s_nop 1")

def rng(k, r, n=4): return "%s[%d:%d]" % (k, r, r + n - 1)
def wbuf(b, ab, i):
    off = 20 * ab + 4 * i
    return ("v", 32 + off) if b == 0 else ("v", 72 + off) if b == 1 else ("a", 180 + off)
def xf(np_): return 144 + 4 * (np_ + 1)
def acc(s, t): return ("a", 4 * t) if s == "A" else ("v", 112 + 4 * t)
def n8(mu): return [2 * mu, 2 * mu + 1, 4 + 2 * mu, 5 + 2 * mu]

class Seg:
    CAP = 2
    def __init__(s, mu):
        s.mu = mu; s.mf = []; s.fill = []; s.used = []; s.burst = {}; s.touch = {}; s.nss = 0; s.ss0 = []
    def slot(s, ins, a):
        s.touch.setdefault(a, []).append(len(s.mf))
        s.mf.append(ins); s.fill.append([]); s.used.append(0)
    def put(s, sl, ins, cost=1):
        s.fill[sl].append(ins); s.used[sl] += cost
    def superstep(s, b, aset, vm=10, wload=True, xnext=True, xswitch=None):
        k = s.nss; s.nss += 1
        base = len(s.mf); s.ss0.append(base)
        N8 = n8(s.mu)
        for np_ in range(-1, 8):
            s.burst[(k, np_)] = len(s.mf)
            x = rng("a", xf(np_))
            for ab, n in ((0, np_), (1, np_ + 1)):
                if n < 0 or n > 7: continue
                tl = [(ml, ml * 8 + n) for ml in range(4)]
                if n in N8: tl.append((4, 32 + N8.index(n)))
                for wi, t in tl:
                    a = acc(aset, t); w = wbuf(b, ab, wi)
                    s.slot("v_mfma_f32_16x16x32_bf16 %s, %s, %s, %s" % (rng(*a), rng(*w), x, rng(*a)), a)
        assert len(s.mf) - base == 72
        s.put(base, "s_waitcnt vmcnt(%d) lgkmcnt(1)" % vm)
        s.put(base + 1, "ds_read_b128 %s, v3 offset:%d" % (rng("a", xf(7)), 8 * 4608))
        s.put(s.burst[(k, 4)], "s_waitcnt lgkmcnt(%d)" % (2 if xnext else 0))
        if xnext:
            s.put(base + 2, "v_mov_b32 v3, v13")
            for np_ in range(-1, 7):
                s.put(s.burst[(k, np_ + 1)] + 1, "ds_read_b128 %s, v3 offset:%d" % (rng("a", xf(np_)), (np_ + 1) * 4608))
            p = base + 44
            s.put(p, "v_add_u32 v4, 64, v4")
            s.put(p + 1, "v_cmp_le_u32 vcc, 0x120, v4")
            s.put(p + 4, "v_cndmask_b32 v5, 64, v7, vcc")
            s.put(p + 5, "v_cndmask_b32 v6, 0, v8, vcc")
            s.put(p + 6, "v_add_u32 v13, v3, v5")
            s.put(p + 7, "v_sub_u32 v4, v4, v6")
            if xswitch: s.put(p + 8, "v_add_u32 v13, %s, v13" % xswitch)
        if wload:
            nb = (b + 2) % 3
            p = base + 3
            for ab in range(2):
                for i in range(5):
                    w = wbuf(nb, ab, i)
                    if i < 4:
                        s.put(p, "buffer_load_dwordx4 %s, v1, s[16:19], s%d offen offset:%d" % (rng(*w), 34 + ab, 1024 * i))
                    else:
                        s.put(p, "buffer_load_dwordx4 %s, v2, s[16:19], s%d offen" % (rng(*w), 34 + ab))
                    p += 3
            s.put(p, "s_add_u32 s34, s34, 18432")
            s.put(p + 1, "s_add_u32 s35, s35, 18432")
        return k
    def pour(s, items, start):
        p = start
        for it in items:
            if isinstance(it, str): it = dict(ins=it)
            cost = it.get("cost", 1)
            p = max(p, it.get("rel", 0))
            while True:
                assert p < len(s.mf), "pour overflow: " + it["ins"]
                ok = s.used[p] + cost <= s.CAP or (s.used[p] == 0)
                a = it.get("rd") or it.get("wr")
                if ok and a:
                    for t in s.touch.get(a, []):
                        if t < p <= t + 8: ok = False
                        if it.get("wr") and t - 2 < p <= t: ok = False
                if ok: break
                p += 1
            assert p <= it.get("dl", 1 << 30), "deadline miss: %s %d" % (it["ins"], p)
            s.put(p, it["ins"], cost)
            p += it.get("gap", 0)
        return p
    def emit(s):
        lin = []
        for m, f in zip(s.mf, s.fill):
            lin += f; lin.append(m)
        cnt = 0; tags = {}
        for x in lin:
            if x.startswith("@wait "):
                n = cnt - tags[x[6:]]
                e("s_waitcnt lgkmcnt(%d)" % min(n, 15)); continue
            tag = None
            if " @" in x: x, tag = x.split(" @")
            if x.startswith("ds_"): cnt += 1
            if tag: tags[tag] = cnt
            e(x)

def t_advance():
    return ["v_add_u32 v11, 4, v11",
            dict(ins="v_cmp_le_u32 s[40:41], 36, v11", gap=2),
            "v_add_u32 v10, 8128, v10",
            "v_cndmask_b32 v14, 0, v15, s[40:41]",
            "v_cndmask_b32 v16, 0, 36, s[40:41]",
            "v_add_u32 v10, v10, v14",
            "v_sub_u32 v11, v11, v16"]
def t_loads(k):
    B = 112 + 8 * k
    return ["v_add_u32 v17, 576, v10",
            "v_subrev_u32 v18, 576, v10",
            "buffer_load_dwordx4 %s, v17, s[12:15], 0 offen" % rng("v", B),
            "buffer_load_dwordx4 %s, v18, s[12:15], 0 offen" % rng("v", B + 4)]
def t_compute(k):
    B = 112 + 8 * k; C = B + 4; A = 136
    r = []
    for i in range(4):
        t = 140 + 6 * (i % 2)
        r += ["v_lshlrev_b32 v%d, 16, v%d" % (t, A + i), "v_and_b32 v%d, s38, v%d" % (t + 1, A + i),
              "v_lshlrev_b32 v%d, 16, v%d" % (t + 2, B + i), "v_and_b32 v%d, s38, v%d" % (t + 3, B + i),
              "v_lshlrev_b32 v%d, 16, v%d" % (t + 4, C + i), "v_and_b32 v%d, s38, v%d" % (t + 5, C + i),
              "v_sub_f32 v%d, v%d, v%d" % (t + 2, t + 2, t), "v_sub_f32 v%d, v%d, v%d" % (t + 3, t + 3, t + 1),
              "v_sub_f32 v%d, v%d, v%d" % (t + 4, t + 4, t), "v_sub_f32 v%d, v%d, v%d" % (t + 5, t + 5, t + 1),
              "v_cvt_pk_bf16_f32 v%d, v%d, v%d" % (164 + i, t + 2, t + 3),
              "v_cvt_pk_bf16_f32 v%d, v%d, v%d" % (168 + i, t + 4, t + 5)]
    return r

po, pkd = gen_prep()
out.append(HDR + '.amdgcn_target "amdgcn-amd-amdhsa--gfx950"\n.text')
out.extend(po)
out.append(".p2align 8\n.globl %s_kernel\n.type %s_kernel,@function" % (NAME, NAME))
lab(NAME + "_kernel")
e("s_cmp_ge_u32 s2, 252")
e("s_cbranch_scc1 L_end")
stamp()
e("s_load_dwordx2 s[4:5], s[0:1], 0")
e("s_load_dwordx2 s[10:11], s[0:1], 24")
e("s_load_dwordx2 s[60:61], s[0:1], 40")
e("v_lshrrev_b32 v1, 6, v0")
e("v_mov_b32 v19, v0")
e("v_and_b32 v0, 63, v0")
e("v_readfirstlane_b32 s28, v1")
e("s_cmp_ge_u32 s2, 126")
e("s_cselect_b32 s32, 1, 0")
e("s_mul_i32 s3, s32, 126")
e("s_sub_u32 s33, s2, s3")
e("s_and_b32 s39, s33, 1")
e("s_lshl_b32 s31, s33, 7")
e("s_sub_u32 s31, s31, 128")
e("s_and_b32 s29, s28, 1")
e("s_lshr_b32 s30, s28, 1")
e("s_lshl_b32 s3, s39, 1")
e("s_add_u32 s3, s3, s30")
e("s_mul_i32 s34, s3, %d" % (54 * 18432))
e("s_add_u32 s35, s34, 9216")
e("s_mov_b32 s38, 0xffff0000")
e("v_lshlrev_b32 v9, 4, v0")
e("s_lshl_b32 s3, s29, 12")
e("v_add_u32 v1, s3, v9")
e("v_add_u32 v2, 8192, v9")
c("transform/DMA addressing")
e("v_mul_u32_u24 v20, 1821, v19")
e("v_lshrrev_b32 v20, 16, v20")
e("v_mul_u32_u24 v21, 36, v20")
e("v_sub_u32 v11, v19, v21")
e("v_mul_u32_u24 v20, 576, v20")
e("v_lshl_add_u32 v20, v19, 4, v20")
e("s_sub_u32 s3, s31, 60")
e("s_mul_i32 s3, s3, 288")
e("v_add_u32 v10, s3, v20")
e("v_mov_b32 v22, v10")
e("v_mov_b32 v23, v11")
e("v_mov_b32 v15, 576")
e("v_lshlrev_b32 v12, 4, v19")
e("s_lshl_b32 s42, s28, 10")
e("s_waitcnt lgkmcnt(0)")
e("s_mul_i32 s3, s32, 4608000")
e("s_add_u32 s12, s4, s3")
e("s_addc_u32 s13, s5, 0")
e("s_and_b32 s13, s13, 0xffff")
e("s_mov_b32 s14, 4608000")
e("s_mov_b32 s15, 0x20000")
e("s_mov_b32 s16, s60")
e("s_and_b32 s17, s61, 0xffff")
e("s_mov_b32 s18, %d" % WS_END)
e("s_mov_b32 s19, 0x20000")
e("s_mov_b32 s24, s10")
e("s_and_b32 s25, s11, 0xffff")
e("s_mov_b32 s26, 9216000")
e("s_mov_b32 s27, 0x20000")
c("u0 DMA: 12 pieces per wave")
e("s_mov_b32 m0, s42")
def flat(items):
    for it in items:
        if isinstance(it, dict):
            e(it["ins"])
            if it.get("gap"): e("s_nop 0")
        else: e(it)
for i in range(12):
    e("s_nop 0")
    e("buffer_load_dwordx4 v10, s[12:15], 0 offen lds")
    if i < 11:
        flat(t_advance())
        e("s_add_u32 m0, m0, 4096")
e("v_mov_b32 v10, v22")
e("v_mov_b32 v11, v23")
for b in range(2):
    for ab in range(2):
        for i in range(5):
            w = wbuf(b, ab, i)
            if i < 4: e("buffer_load_dwordx4 %s, v1, s[16:19], s%d offen offset:%d" % (rng(*w), 34 + ab, 1024 * i))
            else: e("buffer_load_dwordx4 %s, v2, s[16:19], s%d offen" % (rng(*w), 34 + ab))
    e("s_add_u32 s34, s34, 18432")
    e("s_add_u32 s35, s35, 18432")
    flat(t_loads(b))
    flat(t_advance())
c("X read address")
e("v_and_b32 v20, 15, v0")
e("v_lshrrev_b32 v21, 4, v0")
e("s_lshl_b32 s3, s30, 3")
e("s_sub_u32 s3, 14, s3")
e("v_add_u32 v3, s3, v20")
e("v_mul_u32_u24 v3, 288, v3")
e("v_lshlrev_b32 v4, 4, v21")
e("v_add_u32 v3, v3, v4")
e("v_add_u32 v13, 64, v3")
e("v_add_u32 v4, 64, v4")
e("v_mov_b32 v7, -800")
e("v_mov_b32 v8, 288")
c("array switch constants: s43 (P->2), s44 (2->3)")
e("s_cmp_eq_u32 s30, 0")
e("s_cselect_b32 s43, 2, 1")
e("s_mul_i32 s43, s43, %d" % ARR)
e("s_add_u32 s43, s43, 2304")
e("s_cmp_eq_u32 s30, 0")
e("s_mov_b32 s3, %d" % (ARR + 2304))
e("s_cselect_b32 s44, %d, s3" % (2304 - ARR))
for r in range(144):
    e("v_accvgpr_write_b32 a%d, 0" % r)
e("s_waitcnt vmcnt(24)")
e("s_barrier")
stamp()
for np_ in range(-1, 7):
    e("ds_read_b128 %s, v3 offset:%d" % (rng("a", xf(np_)), (np_ + 1) * 4608))
e("s_mov_b32 s36, 4")
e("s_cmp_eq_u32 s29, 1")
e("s_cbranch_scc1 L_mu1")

def loop_end(label):
    e("s_sub_u32 s36, s36, 1")
    e("s_cmp_lg_u32 s36, 0")
    e("s_cbranch_scc1 %s" % label)

def act_tile(R, z):
    return [
        "v_pk_mul_f32 v[%d:%d], v[%d:%d], s[50:51]" % (R, R + 1, R, R + 1),
        "v_pk_mul_f32 v[%d:%d], v[%d:%d], s[52:53]" % (R + 2, R + 3, R + 2, R + 3),
        "v_exp_f32 v%d, v%d" % (R, R), "v_exp_f32 v%d, v%d" % (R + 1, R + 1),
        "v_exp_f32 v%d, v%d" % (R + 2, R + 2), "v_exp_f32 v%d, v%d" % (R + 3, R + 3),
        "v_pk_add_f32 v[%d:%d], v[%d:%d], s[54:55]" % (R, R + 1, R, R + 1),
        "v_rcp_f32 v%d, v%d" % (R, R),
        "v_pk_add_f32 v[%d:%d], v[%d:%d], s[54:55]" % (R + 2, R + 3, R + 2, R + 3),
        "v_rcp_f32 v%d, v%d" % (R + 1, R + 1),
        "v_rcp_f32 v%d, v%d" % (R + 2, R + 2), "v_rcp_f32 v%d, v%d" % (R + 3, R + 3),
        "v_pk_fma_f32 v[%d:%d], v[%d:%d], s[56:57], v[28:29]" % (R, R + 1, R, R + 1),
        "v_pk_mul_f32 v[%d:%d], v[%d:%d], v[%d:%d]" % (R, R + 1, R, R + 1, R + 2, R + 3),
        "v_cvt_pk_bf16_f32 v%d, v%d, v%d" % (z, R, R + 1),
    ]

def body(mu):
    L = "L%d_" % mu
    st0 = nst[0]
    out.append(".p2align 6")
    lab(L + "pt")
    s = Seg(mu)
    for b in range(3):
        k = s.superstep(b, "A", vm=12)
        base = s.ss0[k]
        items = ["ds_read_b128 v[136:139], v12 @ta%d" % b] + t_loads((b + 2) % 3) + t_advance()
        p = s.pour(items, base + 2)
        items = [dict(ins="@wait ta%d" % b, rel=base + 12)] + t_compute(b)
        items += ["ds_write_b128 v12, v[164:167] offset:%d" % ARR, "v_add_u32 v14, %d, v12" % ARR,
                  "ds_write_b128 v14, v[168:171] offset:%d" % ARR, "v_add_u32 v12, 4096, v12"]
        p = s.pour(items, p)
        assert p < base + 72
    s.emit()
    loop_end(L + "pt")
    e("s_waitcnt lgkmcnt(0)")
    e("s_barrier")
    stamp()
    s = Seg(mu)
    for sg in range(12, 21):
        s.superstep(sg % 3, "A", xswitch="s43" if sg == 16 else None)
    N8 = n8(mu)
    items = []
    for n in range(8):
        tl = [ml * 8 + n for ml in range(4)] + ([32 + N8.index(n)] if n in N8 else [])
        for t in tl:
            tt = s.touch[acc("A", t)]
            last = [x for x in tt if x < s.ss0[6]][-1]; nxt = [x for x in tt if x >= s.ss0[6]][0]
            for r in range(4):
                items.append(dict(ins="v_accvgpr_read_b32 v%d, a%d" % (112 + 4 * t + r, 4 * t + r), rel=last + 9, dl=nxt))
    s.pour(items, s.ss0[5])
    s.emit()
    e("s_mov_b32 s36, 4")
    out.append(".p2align 6")
    lab(L + "p2")
    s = Seg(mu)
    for b in range(3): s.superstep(b, "A")
    s.emit()
    loop_end(L + "p2")
    stamp()
    s = Seg(mu)
    vmw = {40: 33, 41: 32}
    for sg in range(33, 42):
        s.superstep(sg % 3, "A" if sg < 36 else "V", vm=vmw.get(sg, 10), xswitch="s44" if sg == 34 else None)
    ss = lambda sg: s.ss0[sg - 33]
    s.pour(["s_mul_i32 s45, s28, 12288", "s_xor_b32 s46, s28, 2", "s_mul_i32 s46, s46, 12288",
            "v_add_u32 v14, s45, v9", "v_add_u32 v15, s46, v9"], ss(33) + 56)
    s.put(ss(35), "s_barrier")
    col = lambda n: [ml * 8 + n for ml in range(4)]
    rounds = [col(4) + col(6) + col(0), col(5) + col(7) + col(1), [34, 35, 32, 33] + col(2) + col(3)]
    if mu == 0: rounds[2] = [34, 35] + col(3)[:2] + col(3)[2:] + [32, 33] + col(2)
    def wr(r, i, reg):
        t = rounds[r][i]
        return dict(ins="ds_write_b128 v%d, %s offset:%d" % (reg, rng("a", 4 * t), 1024 * i), cost=2, rd=acc("A", t))
    s.pour([wr(0, i, 14) for i in range(12)], ss(36))
    for r in range(1, 4):
        sg = 36 + r
        s.put(ss(sg), "s_waitcnt lgkmcnt(0)"); s.put(ss(sg), "s_barrier")
        reg = 15 if r % 2 == 1 else 14
        items = []
        def rd(gq):
            for i in range(2):
                items.append("ds_read_b128 %s, v%d offset:%d @x%d_%d" % (rng("v", 16 + 8 * (gq % 2) + 4 * i), reg, 1024 * (2 * gq + i), r, gq))
        rd(0); rd(1)
        items[-1] = dict(ins=items[-1], gap=6)
        for gq in range(6):
            items.append("@wait x%d_%d" % (r, gq))
            for i in range(2):
                t = rounds[r - 1][2 * gq + i]
                for k in range(4):
                    items.append(dict(ins="v_add_f32 v%d, v%d, v%d" % (112 + 4 * t + k, 112 + 4 * t + k, 16 + 8 * (gq % 2) + 4 * i + k), wr=acc("V", t)))
            if gq + 2 < 6: rd(gq + 2)
            if r < 3:
                for i in range(2): items.append(wr(r, 2 * gq + i, reg))
        p = s.pour(items, ss(sg) + 2)
        assert p < ss(sg + 1), (r, p - ss(sg))
    pre = ["s_lshl_b32 s47, s39, 1", "s_add_u32 s47, s47, %d" % mu, "s_lshl_b32 s47, s47, 10", "s_add_u32 s47, s47, %d" % WS_WO,
           "s_xor_b32 s48, s47, 1024", "s_xor_b32 s49, s39, 1", "s_lshl_b32 s49, s49, 11", "s_add_u32 s49, s49, %d" % WS_WO,
           "s_mul_i32 s58, s39, 4608", "s_add_u32 s58, s58, %d" % WS_WO8, "v_lshlrev_b32 v12, 3, v0"]
    s.pour(pre, ss(36) + 50)
    lds_ = []
    for no in range(9):
        lds_.append(["buffer_load_dwordx4 %s, v9, s[16:19], s47 offen" % rng("a", (no * 4 + 0) * 4), "s_add_u32 s47, s47, 4096"])
        lds_.append(["buffer_load_dwordx4 %s, v9, s[16:19], s48 offen" % rng("a", (no * 4 + 1) * 4), "s_add_u32 s48, s48, 4096"])
        lds_.append(["buffer_load_dwordx4 %s, v9, s[16:19], s49 offen" % rng("a", (no * 4 + 2) * 4)])
        lds_.append(["buffer_load_dwordx4 %s, v9, s[16:19], s49 offen offset:1024" % rng("a", (no * 4 + 3) * 4), "s_add_u32 s49, s49, 4096"])
        lds_.append(["buffer_load_dwordx2 %s, v12, s[16:19], s58 offen" % rng("a", 220 + 2 * no, 2), "s_add_u32 s58, s58, 512"])
    p = s.pour([x for g in lds_[:23] for x in g], ss(39) + 2); assert p < ss(40)
    p = s.pour([x for g in lds_[23:] for x in g], ss(40) + 1); assert p < ss(41)
    s.emit()
    e("s_mov_b32 s36, 3")
    out.append(".p2align 6")
    lab(L + "p3")
    s = Seg(mu)
    for b in range(3): s.superstep(b, "V")
    s.emit()
    loop_end(L + "p3")
    s = Seg(mu)
    s.superstep(0, "V")
    s.superstep(1, "V", wload=False)
    s.superstep(2, "V", vm=0, wload=False, xnext=False)
    pre = ["s_mov_b32 s50, 0x4038aa3b", "s_mov_b32 s51, 0x4038aa3b", "s_mov_b32 s52, 0xbfb8aa3b", "s_mov_b32 s53, 0xbfb8aa3b",
           "s_mov_b32 s54, 1.0", "s_mov_b32 s55, 1.0", "s_mov_b32 s56, -2.0", "s_mov_b32 s57, -2.0",
           "v_mov_b32 v28, 1.0", "v_mov_b32 v29, 1.0",
           "s_mul_i32 s47, s2, 18432", "s_add_u32 s47, s47, %d" % WS_Z,
           "s_lshl_b32 s3, s28, 12", "s_add_u32 s45, s47, s3",
           "s_lshl_b32 s3, s28, 9", "s_add_u32 s46, s47, s3", "s_add_u32 s46, s46, 16384",
           "s_lshl_b32 s3, s30, 13", "s_add_u32 s48, s47, s3", "s_add_u32 s48, s48, %d" % (18432 + 2048 * mu),
           "s_add_u32 s49, s48, 4096", "s_add_u32 s58, s46, 18432",
           "s_lshl_b32 s59, s2, 7", "s_add_u32 s59, s59, %d" % WS_FLAG,
           "s_lshl_b32 s3, s28, 11", "v_add_u32 v14, s3, v9", "s_xor_b32 s3, s3, 2048", "v_add_u32 v15, s3, v9",
           "v_and_b32 v20, 15, v0", "v_lshrrev_b32 v21, 4, v0",
           "v_lshrrev_b32 v22, 1, v20", "v_lshlrev_b32 v22, 2, v22", "v_and_b32 v23, 1, v20", "v_add_u32 v22, v22, v23",
           "s_mul_i32 s3, s32, 16000", "s_add_u32 s3, s3, s31", "s_add_u32 s3, s3, %d" % (32 * (4 + 2 * mu) + 2),
           "s_lshl_b32 s62, s30, 1", "s_sub_u32 s3, s3, s62",
           "v_add_u32 v22, s3, v22", "v_mul_u32_u24 v22, 288, v22",
           "v_lshl_add_u32 v24, v21, 4, v22", "v_lshl_add_u32 v25, v21, 3, v22", "s_movk_i32 s62, 9216",
           "v_mov_b32 v26, 0", "v_mov_b32 v27, 1"]
    s.pour(pre, s.ss0[2] + 4)
    s.emit()
    stamp()
    c("activation: partner-destined tiles")
    for n in range(4):
        for ml in range(4):
            for x in act_tile(112 + 4 * (ml * 8 + n), 32 + 4 * n + ml): e(x)
        e("buffer_store_dwordx4 %s, v9, s[16:19], s45 offen offset:%d sc1" % (rng("v", 32 + 4 * n), 1024 * n))
    for k in range(2):
        for x in act_tile(112 + 4 * (32 + k), 64 + k): e(x)
    e("buffer_store_dwordx2 v[64:65], v12, s[16:19], s46 offen sc1")
    c("sibling-destined tiles")
    for u in range(2):
        n = 4 + 2 * (1 - mu) + u
        for ml in range(4):
            for x in act_tile(112 + 4 * (ml * 8 + n), 32 + 4 * n + ml): e(x)
        e("ds_write_b128 v14, %s offset:%d" % (rng("v", 32 + 4 * n), 1024 * u))
    e("s_waitcnt vmcnt(0) lgkmcnt(0)")
    e("s_barrier")
    e("s_cmp_lg_u32 s28, 0")
    e("s_cbranch_scc1 %snoflag" % L)
    e("s_mov_b64 exec, 1")
    e("buffer_store_dword v27, v26, s[16:19], s59 offen sc1")
    e("s_mov_b64 exec, -1")
    lab(L + "noflag")
    e("s_cmp_eq_u32 s33, 125")
    e("s_cbranch_scc1 L_end")
    stamp()
    for u in range(2):
        e("ds_read_b128 %s, v15 offset:%d" % (rng("v", 72 + 4 * u), 1024 * u))
    c("own tiles")
    for u in range(2):
        n = 4 + 2 * mu + u
        for ml in range(4):
            for x in act_tile(112 + 4 * (ml * 8 + n), 32 + 4 * n + ml): e(x)
        for x in act_tile(112 + 4 * (34 + u), 66 + 2 * u): e(x)
    e("s_waitcnt lgkmcnt(0)")
    e("s_nop 1")
    a2 = lambda u, no: 112 + (u * 9 + no) * 4
    c("GEMM2 own half")
    for k in range(2):
        for no in range(9):
            for u in range(2):
                z = (32 + 4 * (4 + 2 * mu + u)) if k == 0 else 72 + 4 * u
                d = rng("v", a2(u, no))
                e("v_mfma_f32_16x16x32_bf16 %s, %s, %s, %s" % (d, rng("a", (no * 4 + k) * 4), rng("v", z), "0" if k == 0 else d))
    stamp()
    c("poll partner flag")
    e("s_add_u32 s59, s59, 128")
    e("s_mov_b32 s36, 0x4000")
    lab(L + "poll")
    e("buffer_load_dword v30, v26, s[16:19], s59 offen sc1")
    e("s_waitcnt vmcnt(0)")
    e("v_readfirstlane_b32 s3, v30")
    e("s_cmp_lg_u32 s3, 0")
    e("s_cbranch_scc1 %sgo" % L)
    e("s_sub_u32 s36, s36, 1")
    e("s_cmp_lg_u32 s36, 0")
    e("s_cbranch_scc1 %spoll" % L)
    lab(L + "go")
    stamp()
    for u in range(2):
        e("buffer_load_dwordx4 %s, v9, s[16:19], s48 offen offset:%d sc1" % (rng("v", 80 + 8 * u), 1024 * u))
        e("buffer_load_dwordx4 %s, v9, s[16:19], s49 offen offset:%d sc1" % (rng("v", 84 + 8 * u), 1024 * u))
        e("buffer_load_dword v%d, v12, s[16:19], s58 offen offset:%d sc1" % (67 + 2 * u, 4 * u))
    for u in range(2):
        e("s_waitcnt vmcnt(%d)" % (3 if u == 0 else 5))
        for k in range(2, 5):
            for no in range(9):
                d = rng("v", a2(u, no))
                if k < 4:
                    e("v_mfma_f32_16x16x32_bf16 %s, %s, %s, %s" % (d, rng("a", (no * 4 + k) * 4), rng("v", 80 + 8 * u + 4 * (k - 2)), d))
                else:
                    e("v_mfma_f32_16x16x16_bf16 %s, %s, %s, %s" % (d, rng("a", 220 + 2 * no, 2), rng("v", 66 + 2 * u, 2), d))
        so = "0" if u == 0 else "s62"
        for P in range(4):
            o = 184 + (u * 5 + P) * 4
            if P == 3: e("s_nop 3")
            for ee in range(2):
                d = a2(u, 2 * P + ee)
                e("v_cvt_pk_bf16_f32 v%d, v%d, v%d" % (o + 2 * ee, d, d + 1))
                e("v_cvt_pk_bf16_f32 v%d, v%d, v%d" % (o + 2 * ee + 1, d + 2, d + 3))
            e("buffer_store_dwordx4 %s, v24, s[24:27], %s offen offset:%d" % (rng("v", o), so, 64 * P))
        o = 184 + (u * 5 + 4) * 4
        d = a2(u, 8)
        e("v_cvt_pk_bf16_f32 v%d, v%d, v%d" % (o, d, d + 1))
        e("v_cvt_pk_bf16_f32 v%d, v%d, v%d" % (o + 1, d + 2, d + 3))
        e("buffer_store_dwordx2 %s, v25, s[24:27], %s offen offset:256" % (rng("v", o, 2), so))
    if STAMPS:
        e("s_waitcnt vmcnt(0)")
        stamp()
        stamp_flush(nst[0])
        sys.stderr.write("stamps %d\n" % nst[0])
    e("s_endpgm")
    nst[0] = st0

body(0)
lab("L_mu1")
body(1)
lab("L_end")
e("s_endpgm")
out.append('.section .rodata,"a"\n.p2align 6\n' + pkd + """
.p2align 6
.amdhsa_kernel %s_kernel
  .amdhsa_next_free_vgpr 512
  .amdhsa_next_free_sgpr 102
  .amdhsa_accum_offset 256
  .amdhsa_group_segment_fixed_size 0
  .amdhsa_kernarg_size 48
  .amdhsa_user_sgpr_count 2
  .amdhsa_user_sgpr_kernarg_segment_ptr 1
  .amdhsa_system_sgpr_workgroup_id_x 1
.end_amdhsa_kernel""" % NAME)
txt = "\n".join(out) + "\n"
errs = hz.check(txt.split("\n"))
for x in errs[:40]: sys.stderr.write(x + "\n")
sys.stderr.write("%d hazards, %d bytes\n" % (len(errs), len(txt)))
args = [a for a in sys.argv[1:] if not a.startswith("--")]
open(args[0] if args else "cdna_kernels/%s.s" % NAME, "w").write(txt)
```

```python
import sys, re
from prep import *
import hz

NAME = "standalone__autoregressive_conv_wavenet__speech"
STAMPS = "--stamps" in sys.argv
PST = "--pst" in sys.argv
NOREMAP = "--noremap" in sys.argv
GRID = 252 if NOREMAP else 256
HDR = """; Kernarg layout for this problem (48 bytes, ptrs only, base s[0:1]):
;   offset   0: d_in[0] x  shape=(2, 16000, 144) dtype=bfloat16 strides=(4608000, 288, 2) contiguous=True
;   offset   8: d_in[1] w  shape=(31, 144, 288) dtype=bfloat16 strides=(82944, 576, 2) contiguous=True
;   offset  16: d_in[2] w_o  shape=(144, 144) dtype=bfloat16 strides=(288, 2) contiguous=True
;   offset  24: d_out     shape=(2, 16000, 144) dtype=bfloat16 (2 bytes/elem)
;   offset  32: d_debug   256 bytes
;   offset  40: d_ws      268435456 bytes workspace
; @launch kernel=prep_kernel grid=(%d,1,1) block=(192,1,1) lds=0
; @launch kernel=%s_kernel grid=(%d,1,1) block=(256,1,1) lds=163840
""" % (NPREP, NAME, GRID)

out = []
def e(s): out.append(s)
def lab(s): out.append(s + ":")
def c(s): out.append("; " + s)

ARR = 49152
WS_ST = 0x1000000
nst = [0]
def stamp_ins():
    r = 64 + 4 * nst[0]
    nst[0] += 1
    return ["s_memtime s[%d:%d]" % (r, r + 1), "s_memrealtime s[%d:%d]" % (r + 2, r + 3), "s_waitcnt lgkmcnt(0)"]
def stamp(kind="m"):
    if not STAMPS: return
    if kind == "p" and not PST: return
    if kind == "m" and PST: return
    for x in stamp_ins(): e(x)
def stamp_flush(n):
    e("s_lshl_b32 s3, s2, 2")
    e("s_add_u32 s3, s3, s28")
    e("s_mul_i32 s3, s3, %d" % (n * 16))
    e("s_add_u32 s3, s3, %d" % WS_ST)
    e("s_add_u32 s4, s60, s3")
    e("s_addc_u32 s5, s61, 0")
    e("v_mov_b32 v4, 0")
    for i in range(n):
        r = 64 + 4 * i
        for k in range(4):
            e("v_mov_b32 v%d, s%d" % (8 + k, r + k))
        e("global_store_dwordx4 v4, v[8:11], s[4:5] offset:%d" % (16 * i))
        e("s_nop 1")

def rng(k, r, n=4): return "%s[%d:%d]" % (k, r, r + n - 1)
def wbuf(b, ab, i):
    off = 20 * ab + 4 * i
    return ("v", 32 + off) if b == 0 else ("v", 72 + off) if b == 1 else ("a", 180 + off)
def xf(np_): return 144 + 4 * (np_ + 1)
def acc(s, t): return ("a", 4 * t) if s == "A" else ("v", 112 + 4 * t)
def n8(mu): return [2 * mu, 2 * mu + 1, 4 + 2 * mu, 5 + 2 * mu]

def cost_of(ins):
    if ins.startswith("@") or ins.startswith("s_waitcnt") or ins.startswith("s_barrier"): return 0
    if ins.startswith("ds_write_b128"): return 5
    if ins.startswith("ds_write_b64"): return 3
    if ins.startswith("ds_write"): return 2
    if ins.startswith("buffer_store_dwordx4"): return 5
    if ins.startswith("buffer_store"): return 3
    if ins.split()[0] in hz.TRANS: return 2
    return 1
def is_valu(ins): return ins.startswith("v_")

def wloads(sg, sregs=(34, 35)):
    b = sg % 3
    r = []
    for ab in range(2):
        for i in range(5):
            w = wbuf(b, ab, i)
            tag = " @W%d" % sg if (ab, i) == (1, 4) else ""
            if i < 4: r.append("buffer_load_dwordx4 %s, v1, s[16:19], s%d offen offset:%d%s" % (rng(*w), sregs[ab], 1024 * i, tag))
            else: r.append("buffer_load_dwordx4 %s, v2, s[16:19], s%d offen%s" % (rng(*w), sregs[ab], tag))
    return r

class Seg:
    CAP = 2
    def __init__(s, mu, vtags=None):
        s.mu = mu; s.mf = []; s.fill = []; s.used = []; s.burst = {}; s.touch = {}; s.ss0 = {}; s.seq = 0
        s.vtags = dict(vtags or {})
    def slot(s, ins, a):
        s.touch.setdefault(a, []).append(len(s.mf))
        s.mf.append(ins); s.fill.append([]); s.used.append(0)
    def put(s, sl, ins, seq=-1):
        s.fill[sl].append((ins, seq)); s.used[sl] += cost_of(ins)
    def superstep(s, sg, aset, vm=None, wload=True, xnext=True, xswitch=None, wgap=3):
        b = sg % 3
        base = len(s.mf); s.ss0[sg] = base
        N8 = n8(s.mu)
        for np_ in range(-1, 8):
            s.burst[(sg, np_)] = len(s.mf)
            x = rng("a", xf(np_))
            for ab, n in ((0, np_), (1, np_ + 1)):
                if n < 0 or n > 7: continue
                tl = [(ml, ml * 8 + n) for ml in range(4)]
                if n in N8: tl.append((4, 32 + N8.index(n)))
                for wi, t in tl:
                    a = acc(aset, t); w = wbuf(b, ab, wi)
                    s.slot("v_mfma_f32_16x16x32_bf16 %s, %s, %s, %s" % (rng(*a), rng(*w), x, rng(*a)), a)
        assert len(s.mf) - base == 72
        s.ss0[sg + 1] = len(s.mf)
        s.put(base, "@vwait W%d" % sg if vm is None else "s_waitcnt vmcnt(%d)" % vm)
        s.put(base, "s_waitcnt lgkmcnt(1)")
        s.put(base + 1, "ds_read_b128 %s, v3 offset:%d" % (rng("a", xf(7)), 8 * 4608))
        s.put(s.burst[(sg, 4)], "s_waitcnt lgkmcnt(%d)" % (2 if xnext else 0))
        if xnext:
            s.put(base + 2, "v_mov_b32 v3, v13")
            for np_ in range(-1, 7):
                s.put(s.burst[(sg, np_ + 1)] + 1, "ds_read_b128 %s, v3 offset:%d" % (rng("a", xf(np_)), (np_ + 1) * 4608))
            it = ["v_add_u32 v4, 64, v4", dict(ins="v_cmp_le_u32 vcc, 0x120, v4", gap=3),
                  "v_cndmask_b32 v5, 64, v7, vcc", "v_cndmask_b32 v6, 0, v8, vcc",
                  "v_add_u32 v13, v3, v5", "v_sub_u32 v4, v4, v6"]
            if xswitch: it.append("v_add_u32 v13, %s, v13" % xswitch)
            s.pour(it, base + 56)
        if wload:
            it = [dict(ins=x, gap=wgap) for x in wloads(sg + 2)] + ["s_add_u32 s34, s34, 18432", "s_add_u32 s35, s35, 18432"]
            s.pour(it, base + 3)
    def pour(s, items, start):
        s.seq += 1; seq = s.seq
        p = start
        for it in items:
            if isinstance(it, str): it = dict(ins=it)
            ins = it["ins"]; cost = cost_of(ins)
            p = max(p, it.get("rel", 0))
            while True:
                assert p < len(s.mf), "pour overflow: " + ins
                ok = s.used[p] + cost <= s.CAP or (s.used[p] == 0)
                if ok and not is_valu(ins) and any(is_valu(x) and q == seq for x, q in s.fill[p]): ok = False
                a = it.get("rd") or it.get("wr")
                if ok and a:
                    for t in s.touch.get(a, []):
                        if t < p <= t + 8: ok = False
                        if it.get("wr") and t - 2 < p <= t: ok = False
                if ok: break
                p += 1
            assert p <= it.get("dl", 1 << 30), "deadline miss: %s %d" % (ins, p)
            s.put(p, ins, seq)
            p += it.get("gap", 0)
        return p
    def emit(s):
        lin = []
        for m, f in zip(s.mf, s.fill):
            lin += [x for x, q in f if not is_valu(x)] + [x for x, q in f if is_valu(x)]
            lin.append(m)
        cnt = 0; tags = {}; vc = 0; vt = dict(s.vtags)
        for x in lin:
            if x.startswith("@wait "):
                e("s_waitcnt lgkmcnt(%d)" % min(cnt - tags[x[6:]], 15)); continue
            if x.startswith("@vwait "):
                n = vc - vt[x[7:]]; assert n <= 63
                e("s_waitcnt vmcnt(%d)" % n); continue
            if x == "@stamp":
                if STAMPS and not PST:
                    for y in stamp_ins(): e(y)
                continue
            tag = None
            if " @" in x: x, tag = x.split(" @")
            if x.startswith("ds_"): cnt += 1
            if x.startswith("buffer_"): vc += 1
            if tag:
                if x.startswith("ds_"): tags[tag] = cnt
                else: vt[tag] = vc
            e(x)
        over = sum(max(0, u - s.CAP) for u in s.used)
        sys.stderr.write("seg mu%d: %d mfma, overflow units %d\n" % (s.mu, len(s.mf), over))

def t_advance():
    return ["v_add_u32 v11, 4, v11",
            dict(ins="v_cmp_le_u32 s[40:41], 36, v11", gap=2),
            "v_add_u32 v10, 8128, v10",
            "v_cndmask_b32 v14, 0, v15, s[40:41]",
            "v_cndmask_b32 v16, 0, 36, s[40:41]",
            "v_add_u32 v10, v10, v14",
            "v_sub_u32 v11, v11, v16"]
def t_loads(i):
    B = 112 + 8 * (i % 3)
    return ["v_add_u32 v17, 576, v10",
            "v_subrev_u32 v18, 576, v10",
            "buffer_load_dwordx4 %s, v17, s[12:15], 0 offen" % rng("v", B),
            "buffer_load_dwordx4 %s, v18, s[12:15], 0 offen @T%d" % (rng("v", B + 4), i)]
def t_compute(i):
    B = 112 + 8 * (i % 3); C = B + 4; A = 136
    r = []
    for k in range(4):
        t = 140 + 6 * (k % 2)
        r += ["v_lshlrev_b32 v%d, 16, v%d" % (t, A + k), "v_and_b32 v%d, s38, v%d" % (t + 1, A + k),
              "v_lshlrev_b32 v%d, 16, v%d" % (t + 2, B + k), "v_and_b32 v%d, s38, v%d" % (t + 3, B + k),
              "v_lshlrev_b32 v%d, 16, v%d" % (t + 4, C + k), "v_and_b32 v%d, s38, v%d" % (t + 5, C + k),
              "v_sub_f32 v%d, v%d, v%d" % (t + 2, t + 2, t), "v_sub_f32 v%d, v%d, v%d" % (t + 3, t + 3, t + 1),
              "v_sub_f32 v%d, v%d, v%d" % (t + 4, t + 4, t), "v_sub_f32 v%d, v%d, v%d" % (t + 5, t + 5, t + 1),
              "v_cvt_pk_bf16_f32 v%d, v%d, v%d" % (164 + k, t + 2, t + 3),
              "v_cvt_pk_bf16_f32 v%d, v%d, v%d" % (168 + k, t + 4, t + 5)]
    return r

po, pkd = gen_prep()
out.append(HDR + '.amdgcn_target "amdgcn-amd-amdhsa--gfx950"\n.text')
out.append(".macro M d, a, b\nv_mfma_f32_16x16x32_bf16 \\d, \\a, \\b, \\d\n.endm")
out.extend(po)
out.append(".p2align 8\n.globl %s_kernel\n.type %s_kernel,@function" % (NAME, NAME))
lab(NAME + "_kernel")
e("s_cmp_ge_u32 s2, %d" % GRID)
e("s_cbranch_scc1 L_end")
if not NOREMAP:
    c("XCD-friendly remap: logical = (id&7)*32 + (id>>3) ; 252 real")
    e("s_and_b32 s3, s2, 7")
    e("s_lshl_b32 s3, s3, 5")
    e("s_lshr_b32 s2, s2, 3")
    e("s_add_u32 s2, s2, s3")
    e("s_cmp_ge_u32 s2, 252")
    e("s_cbranch_scc1 L_end")
stamp("a")
e("s_load_dwordx2 s[4:5], s[0:1], 0")
e("s_load_dwordx2 s[10:11], s[0:1], 24")
e("s_load_dwordx2 s[60:61], s[0:1], 40")
e("v_lshrrev_b32 v1, 6, v0")
e("v_mov_b32 v19, v0")
e("v_and_b32 v0, 63, v0")
e("v_readfirstlane_b32 s28, v1")
e("s_cmp_ge_u32 s2, 126")
e("s_cselect_b32 s32, 1, 0")
e("s_mul_i32 s3, s32, 126")
e("s_sub_u32 s33, s2, s3")
e("s_and_b32 s39, s33, 1")
e("s_lshl_b32 s31, s33, 7")
e("s_sub_u32 s31, s31, 128")
e("s_and_b32 s29, s28, 1")
e("s_lshr_b32 s30, s28, 1")
e("s_lshl_b32 s3, s39, 1")
e("s_add_u32 s3, s3, s30")
e("s_mul_i32 s34, s3, %d" % (54 * 18432))
e("s_add_u32 s35, s34, 9216")
e("s_mov_b32 s38, 0xffff0000")
e("v_lshlrev_b32 v9, 4, v0")
e("s_lshl_b32 s3, s29, 12")
e("v_add_u32 v1, s3, v9")
e("v_add_u32 v2, 8192, v9")
c("transform/DMA addressing")
e("v_mul_u32_u24 v20, 1821, v19")
e("v_lshrrev_b32 v20, 16, v20")
e("v_mul_u32_u24 v21, 36, v20")
e("v_sub_u32 v11, v19, v21")
e("v_mul_u32_u24 v20, 576, v20")
e("v_lshl_add_u32 v20, v19, 4, v20")
e("s_sub_u32 s3, s31, 60")
e("s_mul_i32 s3, s3, 288")
e("v_add_u32 v10, s3, v20")
e("v_mov_b32 v15, 576")
e("v_lshlrev_b32 v12, 4, v19")
e("s_lshl_b32 s42, s28, 10")
c("precompute the 12 DMA offsets into v[112:123] while the kernarg load is in flight")
def flat(items):
    for it in items:
        if isinstance(it, dict):
            e(it["ins"])
            if it.get("gap"): e("s_nop 0")
        else: e(it.split(" @")[0])
e("v_mov_b32 v23, v11")
for i in range(12):
    e("v_mov_b32 v%d, v10" % (112 + i))
    if i < 11: flat(t_advance())
e("v_mov_b32 v10, v112")
e("v_mov_b32 v11, v23")
e("s_waitcnt lgkmcnt(0)")
stamp("p")
e("s_mov_b32 s16, s60")
e("s_and_b32 s17, s61, 0xffff")
e("s_mov_b32 s18, %d" % WS_END)
e("s_mov_b32 s19, 0x20000")
e("s_mul_i32 s3, s32, 4608000")
e("s_add_u32 s12, s4, s3")
e("s_addc_u32 s13, s5, 0")
e("s_and_b32 s13, s13, 0xffff")
e("s_mov_b32 s14, 4608000")
e("s_mov_b32 s15, 0x20000")
e("s_mov_b32 m0, s42")
e("s_nop 0")
for i in range(12):
    e("buffer_load_dwordx4 v%d, s[12:15], 0 offen lds" % (112 + i))
    if i < 11:
        e("s_add_u32 m0, m0, 4096")
        e("s_nop 0")
stamp("p")
flat(wloads(0))
e("s_add_u32 s34, s34, 18432")
e("s_add_u32 s35, s35, 18432")
stamp("p")
e("s_mov_b32 s24, s10")
e("s_and_b32 s25, s11, 0xffff")
e("s_mov_b32 s26, 9216000")
e("s_mov_b32 s27, 0x20000")
c("X read address")
e("v_and_b32 v20, 15, v0")
e("v_lshrrev_b32 v21, 4, v0")
e("s_lshl_b32 s3, s30, 3")
e("s_sub_u32 s3, 14, s3")
e("v_add_u32 v3, s3, v20")
e("v_mul_u32_u24 v3, 288, v3")
e("v_lshlrev_b32 v4, 4, v21")
e("v_add_u32 v3, v3, v4")
e("v_add_u32 v13, 64, v3")
e("v_add_u32 v4, 64, v4")
e("v_mov_b32 v7, -800")
e("v_mov_b32 v8, 288")
e("s_cmp_eq_u32 s30, 0")
e("s_cselect_b32 s43, 2, 1")
e("s_mul_i32 s43, s43, %d" % ARR)
e("s_add_u32 s43, s43, 2304")
e("s_cmp_eq_u32 s30, 0")
e("s_mov_b32 s3, %d" % (ARR + 2304))
e("s_cselect_b32 s44, %d, s3" % (2304 - ARR))
e("s_add_u32 s36, s34, 18432")
e("s_add_u32 s37, s35, 18432")
stamp("p")
e("s_waitcnt vmcnt(10)")
stamp("p")
e("s_barrier")
stamp("a")
for np_ in range(-1, 7):
    e("ds_read_b128 %s, v3 offset:%d" % (rng("a", xf(np_)), (np_ + 1) * 4608))
e("s_cmp_eq_u32 s29, 1")
e("s_cbranch_scc1 L_mu1")

def loop_end(label):
    e("s_sub_u32 s36, s36, 1")
    e("s_cmp_lg_u32 s36, 0")
    e("s_cbranch_scc1 %s" % label)

def act_tile(R, z):
    return [
        "v_pk_mul_f32 v[%d:%d], v[%d:%d], s[50:51]" % (R, R + 1, R, R + 1),
        "v_pk_mul_f32 v[%d:%d], v[%d:%d], s[52:53]" % (R + 2, R + 3, R + 2, R + 3),
        "v_exp_f32 v%d, v%d" % (R, R), "v_exp_f32 v%d, v%d" % (R + 1, R + 1),
        "v_exp_f32 v%d, v%d" % (R + 2, R + 2), "v_exp_f32 v%d, v%d" % (R + 3, R + 3),
        "v_pk_add_f32 v[%d:%d], v[%d:%d], s[54:55]" % (R, R + 1, R, R + 1),
        "v_rcp_f32 v%d, v%d" % (R, R),
        "v_pk_add_f32 v[%d:%d], v[%d:%d], s[54:55]" % (R + 2, R + 3, R + 2, R + 3),
        "v_rcp_f32 v%d, v%d" % (R + 1, R + 1),
        "v_rcp_f32 v%d, v%d" % (R + 2, R + 2), "v_rcp_f32 v%d, v%d" % (R + 3, R + 3),
        "v_pk_fma_f32 v[%d:%d], v[%d:%d], s[56:57], v[28:29]" % (R, R + 1, R, R + 1),
        "v_pk_mul_f32 v[%d:%d], v[%d:%d], v[%d:%d]" % (R, R + 1, R, R + 1, R + 2, R + 3),
        "v_cvt_pk_bf16_f32 v%d, v%d, v%d" % (z, R, R + 1),
    ]

def body(mu):
    L = "L%d_" % mu
    st0 = nst[0]
    N8 = n8(mu)
    s = Seg(mu, vtags={"W0": 0})
    for sg in range(0, 21):
        s.superstep(sg, "A", wload=(sg != 0), xswitch="s43" if sg == 16 else None)
    seen = set()
    for i in range(72):
        d = s.mf[i].split()[1].rstrip(",")
        if d not in seen:
            seen.add(d)
            s.mf[i] = s.mf[i][:s.mf[i].rindex(",")] + ", 0"
    it = [dict(ins=x, gap=2) for x in wloads(1)] + [dict(ins=x, gap=3) for x in wloads(2, (36, 37))]
    it += ["s_add_u32 s34, s34, 36864", "s_add_u32 s35, s35, 36864"]
    p = s.pour(it, 2); assert p < 72
    for i in range(12):
        p = s.pour(t_loads(i) + t_advance(), s.ss0[i + 2] + 36); assert p < s.ss0[i + 3]
    for i in range(12):
        base = s.ss0[i + 4]
        items = [dict(ins="ds_read_b128 v[136:139], v12 @ta%d" % i, gap=8), "@wait ta%d" % i, "@vwait T%d" % i] + t_compute(i)
        items += ["v_add_u32 v19, %d, v12" % ARR,
                  "ds_write_b64 v12, v[164:165] offset:%d" % ARR, "ds_write_b64 v12, v[166:167] offset:%d" % (ARR + 8),
                  "ds_write_b64 v19, v[168:169] offset:%d" % ARR, "ds_write_b64 v19, v[170:171] offset:%d" % (ARR + 8),
                  "v_add_u32 v12, 4096, v12"]
        p = s.pour(items, base + 2); assert p < base + 72, p - base
    s.put(s.ss0[16] + 20, "s_waitcnt lgkmcnt(0)"); s.put(s.ss0[16] + 20, "s_barrier")
    s.put(s.ss0[12], "@stamp")
    items = []
    for n in range(8):
        tl = [ml * 8 + n for ml in range(4)] + ([32 + N8.index(n)] if n in N8 else [])
        for t in tl:
            tt = s.touch[acc("A", t)]
            last = [x for x in tt if x < s.ss0[18]][-1]; nxt = [x for x in tt if x >= s.ss0[18]][0]
            for r in range(4):
                items.append(dict(ins="v_accvgpr_read_b32 v%d, a%d" % (112 + 4 * t + r, 4 * t + r), rel=last + 9, dl=nxt))
    s.pour(items, s.ss0[17])
    s.emit()
    e("s_mov_b32 s36, 4")
    out.append(".p2align 6")
    lab(L + "p2")
    s = Seg(mu)
    for b in range(3): s.superstep(21 + b, "A", vm=10)
    s.emit()
    loop_end(L + "p2")
    stamp()
    s = Seg(mu, vtags={"W33": -10, "W34": 0})
    for sg in range(33, 54):
        s.superstep(sg, "A" if sg < 36 else "V", wload=(sg < 52), xnext=(sg < 53), xswitch="s44" if sg == 34 else None)
    ss = lambda sg: s.ss0[sg]
    s.pour(["s_mul_i32 s45, s28, 12288", "s_xor_b32 s46, s28, 2", "s_mul_i32 s46, s46, 12288",
            "v_add_u32 v14, s45, v9", "v_add_u32 v15, s46, v9"], ss(33) + 40)
    s.put(ss(35), "s_barrier")
    col = lambda n: [ml * 8 + n for ml in range(4)]
    rounds = [col(4) + col(6) + col(0), col(5) + col(7) + col(1), [34, 35, 32, 33] + col(2) + col(3)]
    if mu == 0: rounds[2] = [34, 35] + col(3)[:2] + col(3)[2:] + [32, 33] + col(2)
    def wr(r, i, reg):
        t = rounds[r][i]
        return [dict(ins="ds_write_b64 v%d, %s offset:%d" % (reg, rng("a", 4 * t + 2 * h, 2), 1024 * i + 8 * h), rd=acc("A", t)) for h in range(2)]
    s.pour([x for i in range(12) for x in wr(0, i, 14)], ss(36))
    RS = {1: 37, 2: 39, 3: 41}
    for r in range(1, 4):
        sg = RS[r]
        s.put(ss(sg), "s_waitcnt lgkmcnt(0)"); s.put(ss(sg), "s_barrier")
        reg = 15 if r % 2 == 1 else 14
        items = []
        def rd(gq):
            for i in range(2):
                items.append("ds_read_b128 %s, v%d offset:%d @x%d_%d" % (rng("v", 16 + 8 * (gq % 2) + 4 * i), reg, 1024 * (2 * gq + i), r, gq))
        rd(0); rd(1)
        items[-1] = dict(ins=items[-1], gap=6)
        for gq in range(6):
            items.append("@wait x%d_%d" % (r, gq))
            for i in range(2):
                t = rounds[r - 1][2 * gq + i]
                for k in range(4):
                    items.append(dict(ins="v_add_f32 v%d, v%d, v%d" % (112 + 4 * t + k, 112 + 4 * t + k, 16 + 8 * (gq % 2) + 4 * i + k), wr=acc("V", t)))
            if gq + 2 < 6: rd(gq + 2)
            if r < 3:
                for i in range(2): items += wr(r, 2 * gq + i, reg)
        p = s.pour(items, ss(sg) + 2)
        assert p < ss(sg + 2) - 8, (r, p - ss(sg))
    pre = ["s_lshl_b32 s47, s39, 1", "s_add_u32 s47, s47, %d" % mu, "s_lshl_b32 s47, s47, 10", "s_add_u32 s47, s47, %d" % WS_WO,
           "s_xor_b32 s48, s47, 1024", "s_xor_b32 s49, s39, 1", "s_lshl_b32 s49, s49, 11", "s_add_u32 s49, s49, %d" % WS_WO,
           "s_mul_i32 s58, s39, 4608", "s_add_u32 s58, s58, %d" % WS_WO8, "v_lshlrev_b32 v12, 3, v0"]
    s.pour(pre, ss(34) + 40)
    lds_ = []
    for no in range(9):
        lds_.append(["buffer_load_dwordx4 %s, v9, s[16:19], s47 offen" % rng("a", (no * 4 + 0) * 4), "s_add_u32 s47, s47, 4096"])
        lds_.append(["buffer_load_dwordx4 %s, v9, s[16:19], s48 offen" % rng("a", (no * 4 + 1) * 4), "s_add_u32 s48, s48, 4096"])
        lds_.append(["buffer_load_dwordx4 %s, v9, s[16:19], s49 offen" % rng("a", (no * 4 + 2) * 4)])
        lds_.append(["buffer_load_dwordx4 %s, v9, s[16:19], s49 offen offset:1024" % rng("a", (no * 4 + 3) * 4), "s_add_u32 s49, s49, 4096"])
        lds_.append(["buffer_load_dwordx2 %s, v12, s[16:19], s58 offen" % rng("a", 220 + 2 * no, 2), "s_add_u32 s58, s58, 512"])
    k = 0
    for sg in range(41, 53):
        n = 3 if sg < 52 else 12
        it = []
        for g in lds_[k:k + n]:
            it.append(g[0])
            it.append(dict(ins=g[1], gap=4) if len(g) > 1 else dict(ins="s_nop 0", gap=4))
        k += n
        p = s.pour(it, ss(sg) + (36 if sg < 52 else 3)); assert p < ss(sg + 1) + 4
    assert k == 45
    pre = ["s_mov_b32 s50, 0x4038aa3b", "s_mov_b32 s51, 0x4038aa3b", "s_mov_b32 s52, 0xbfb8aa3b", "s_mov_b32 s53, 0xbfb8aa3b",
           "s_mov_b32 s54, 1.0", "s_mov_b32 s55, 1.0", "s_mov_b32 s56, -2.0", "s_mov_b32 s57, -2.0",
           "v_mov_b32 v28, 1.0", "v_mov_b32 v29, 1.0",
           "s_mul_i32 s47, s2, 18432", "s_add_u32 s47, s47, %d" % WS_Z,
           "s_lshl_b32 s3, s28, 12", "s_add_u32 s45, s47, s3",
           "s_lshl_b32 s3, s28, 9", "s_add_u32 s46, s47, s3", "s_add_u32 s46, s46, 16384",
           "s_lshl_b32 s3, s30, 13", "s_add_u32 s48, s47, s3", "s_add_u32 s48, s48, %d" % (18432 + 2048 * mu),
           "s_add_u32 s49, s48, 4096", "s_add_u32 s58, s46, 18432",
           "s_lshl_b32 s59, s2, 7", "s_add_u32 s59, s59, %d" % WS_FLAG,
           "s_lshl_b32 s3, s28, 11", "v_add_u32 v14, s3, v9", "s_xor_b32 s3, s3, 2048", "v_add_u32 v15, s3, v9",
           "v_and_b32 v20, 15, v0", "v_lshrrev_b32 v21, 4, v0",
           "v_lshrrev_b32 v22, 1, v20", "v_lshlrev_b32 v22, 2, v22", "v_and_b32 v23, 1, v20", "v_add_u32 v22, v22, v23",
           "s_mul_i32 s3, s32, 16000", "s_add_u32 s3, s3, s31", "s_add_u32 s3, s3, %d" % (32 * (4 + 2 * mu) + 2),
           "s_lshl_b32 s62, s30, 1", "s_sub_u32 s3, s3, s62",
           "v_add_u32 v22, s3, v22", "v_mul_u32_u24 v22, 288, v22",
           "v_lshl_add_u32 v24, v21, 4, v22", "v_lshl_add_u32 v25, v21, 3, v22", "s_movk_i32 s62, 9216",
           "v_mov_b32 v26, 0", "v_mov_b32 v27, 1"]
    s.pour(pre, ss(53) + 6)
    s.put(ss(43), "@stamp")
    s.emit()
    stamp()
    c("activation: partner-destined tiles")
    for n in range(4):
        for ml in range(4):
            for x in act_tile(112 + 4 * (ml * 8 + n), 32 + 4 * n + ml): e(x)
        e("buffer_store_dwordx4 %s, v9, s[16:19], s45 offen offset:%d sc1" % (rng("v", 32 + 4 * n), 1024 * n))
    for k in range(2):
        for x in act_tile(112 + 4 * (32 + k), 64 + k): e(x)
    e("buffer_store_dwordx2 v[64:65], v12, s[16:19], s46 offen sc1")
    c("sibling-destined tiles")
    for u in range(2):
        n = 4 + 2 * (1 - mu) + u
        for ml in range(4):
            for x in act_tile(112 + 4 * (ml * 8 + n), 32 + 4 * n + ml): e(x)
        e("ds_write_b128 v14, %s offset:%d" % (rng("v", 32 + 4 * n), 1024 * u))
    e("s_waitcnt vmcnt(0) lgkmcnt(0)")
    e("s_barrier")
    e("s_cmp_lg_u32 s28, 0")
    e("s_cbranch_scc1 %snoflag" % L)
    e("s_mov_b64 exec, 1")
    e("buffer_store_dword v27, v26, s[16:19], s59 offen sc1")
    e("s_mov_b64 exec, -1")
    lab(L + "noflag")
    e("s_cmp_eq_u32 s33, 125")
    e("s_cbranch_scc1 L_end")
    stamp()
    for u in range(2):
        e("ds_read_b128 %s, v15 offset:%d" % (rng("v", 72 + 4 * u), 1024 * u))
    c("own tiles")
    for u in range(2):
        n = 4 + 2 * mu + u
        for ml in range(4):
            for x in act_tile(112 + 4 * (ml * 8 + n), 32 + 4 * n + ml): e(x)
        for x in act_tile(112 + 4 * (34 + u), 66 + 2 * u): e(x)
    e("s_add_u32 s59, s59, 128")
    e("s_mov_b32 s36, 0x4000")
    e("buffer_load_dword v30, v26, s[16:19], s59 offen sc1")
    e("s_waitcnt lgkmcnt(0)")
    a2 = lambda u, no: 112 + (u * 9 + no) * 4
    c("GEMM2 own half")
    for k in range(2):
        for no in range(9):
            for u in range(2):
                z = (32 + 4 * (4 + 2 * mu + u)) if k == 0 else 72 + 4 * u
                d = rng("v", a2(u, no))
                e("v_mfma_f32_16x16x32_bf16 %s, %s, %s, %s" % (d, rng("a", (no * 4 + k) * 4), rng("v", z), "0" if k == 0 else d))
    c("poll partner flag")
    lab(L + "poll")
    e("s_waitcnt vmcnt(0)")
    e("v_readfirstlane_b32 s3, v30")
    e("s_cmp_lg_u32 s3, 0")
    e("s_cbranch_scc1 %sgo" % L)
    e("buffer_load_dword v30, v26, s[16:19], s59 offen sc1")
    e("s_sub_u32 s36, s36, 1")
    e("s_cmp_lg_u32 s36, 0")
    e("s_cbranch_scc1 %spoll" % L)
    lab(L + "go")
    stamp()
    for u in range(2):
        e("buffer_load_dwordx4 %s, v9, s[16:19], s48 offen offset:%d sc1" % (rng("v", 80 + 8 * u), 1024 * u))
        e("buffer_load_dwordx4 %s, v9, s[16:19], s49 offen offset:%d sc1" % (rng("v", 84 + 8 * u), 1024 * u))
        e("buffer_load_dword v%d, v12, s[16:19], s58 offen offset:%d sc1" % (67 + 2 * u, 4 * u))
    for u in range(2):
        e("s_waitcnt vmcnt(%d)" % (3 if u == 0 else 5))
        for k in range(2, 5):
            for no in range(9):
                d = rng("v", a2(u, no))
                if k < 4:
                    e("v_mfma_f32_16x16x32_bf16 %s, %s, %s, %s" % (d, rng("a", (no * 4 + k) * 4), rng("v", 80 + 8 * u + 4 * (k - 2)), d))
                else:
                    e("v_mfma_f32_16x16x16_bf16 %s, %s, %s, %s" % (d, rng("a", 220 + 2 * no, 2), rng("v", 66 + 2 * u, 2), d))
        so = "0" if u == 0 else "s62"
        for P in range(4):
            o = 184 + (u * 5 + P) * 4
            if P == 3: e("s_nop 3")
            for ee in range(2):
                d = a2(u, 2 * P + ee)
                e("v_cvt_pk_bf16_f32 v%d, v%d, v%d" % (o + 2 * ee, d, d + 1))
                e("v_cvt_pk_bf16_f32 v%d, v%d, v%d" % (o + 2 * ee + 1, d + 2, d + 3))
            e("buffer_store_dwordx4 %s, v24, s[24:27], %s offen offset:%d" % (rng("v", o), so, 64 * P))
        o = 184 + (u * 5 + 4) * 4
        d = a2(u, 8)
        e("v_cvt_pk_bf16_f32 v%d, v%d, v%d" % (o, d, d + 1))
        e("v_cvt_pk_bf16_f32 v%d, v%d, v%d" % (o + 1, d + 2, d + 3))
        e("buffer_store_dwordx2 %s, v25, s[24:27], %s offen offset:256" % (rng("v", o, 2), so))
    if STAMPS:
        e("s_waitcnt vmcnt(0)")
        stamp("a")
        stamp_flush(nst[0])
        sys.stderr.write("stamps %d\n" % nst[0])
    e("s_endpgm")
    nst[0] = st0

body(0)
lab("L_mu1")
body(1)
lab("L_end")
e("s_endpgm")
out.append('.section .rodata,"a"\n.p2align 6\n' + pkd + """
.p2align 6
.amdhsa_kernel %s_kernel
  .amdhsa_next_free_vgpr 512
  .amdhsa_next_free_sgpr 102
  .amdhsa_accum_offset 256
  .amdhsa_group_segment_fixed_size 0
  .amdhsa_kernarg_size 48
  .amdhsa_user_sgpr_count 2
  .amdhsa_user_sgpr_kernarg_segment_ptr 1
  .amdhsa_system_sgpr_workgroup_id_x 1
.end_amdhsa_kernel""" % NAME)
lines = "\n".join(out).split("\n")
errs = hz.check([l for l in lines if "\\" not in l])
for x in errs[:40]: sys.stderr.write(x + "\n")
mre = re.compile(r"^v_mfma_f32_16x16x32_bf16 (\S+), (\S+), (\S+), (\S+)$")
def shrink(l):
    m = mre.match(l)
    if m and m.group(1) == m.group(4) and "\\" not in l: return "M %s,%s,%s" % (m.group(1), m.group(2), m.group(3))
    return l
txt = "\n".join(shrink(l) for l in lines) + "\n"
sys.stderr.write("%d hazards, %d bytes\n" % (len(errs), len(txt)))
args = [a for a in sys.argv[1:] if not a.startswith("--")]
open(args[0] if args else "cdna_kernels/%s.s" % NAME, "w").write(txt)
```

```python
import sys, re
from prep import *
import hz

NAME = "standalone__autoregressive_conv_wavenet__speech"
STAMPS = "--stamps" in sys.argv
PST = "--pst" in sys.argv
NOREMAP = "--noremap" in sys.argv
NOPF = "--nopf" in sys.argv
GRID = 252 if NOREMAP else 256
HDR = """; Kernarg layout for this problem (48 bytes, ptrs only, base s[0:1]):
;   offset   0: d_in[0] x  shape=(2, 16000, 144) dtype=bfloat16 strides=(4608000, 288, 2) contiguous=True
;   offset   8: d_in[1] w  shape=(31, 144, 288) dtype=bfloat16 strides=(82944, 576, 2) contiguous=True
;   offset  16: d_in[2] w_o  shape=(144, 144) dtype=bfloat16 strides=(288, 2) contiguous=True
;   offset  24: d_out     shape=(2, 16000, 144) dtype=bfloat16 (2 bytes/elem)
;   offset  32: d_debug   256 bytes
;   offset  40: d_ws      268435456 bytes workspace
; @launch kernel=prep_kernel grid=(%d,1,1) block=(192,1,1) lds=0
; @launch kernel=%s_kernel grid=(%d,1,1) block=(256,1,1) lds=163840
""" % (NPREP, NAME, GRID)

out = []
def e(s): out.append(s)
def lab(s): out.append(s + ":")
def c(s): out.append("; " + s)

ARR = 49152
D1 = 12288
D0 = D1 + ARR
U0 = D0 + ARR
WS_ST = 0x1000000
nst = [0]
def stamp_ins():
    r = 64 + 4 * nst[0]
    nst[0] += 1
    return ["s_memtime s[%d:%d]" % (r, r + 1), "s_memrealtime s[%d:%d]" % (r + 2, r + 3), "s_waitcnt lgkmcnt(0)"]
def stamp(kind="m"):
    if not STAMPS: return
    if kind == "p" and not PST: return
    if kind == "m" and PST: return
    for x in stamp_ins(): e(x)
def stamp_flush(n):
    e("s_lshl_b32 s3, s2, 2")
    e("s_add_u32 s3, s3, s28")
    e("s_mul_i32 s3, s3, %d" % (n * 16))
    e("s_add_u32 s3, s3, %d" % WS_ST)
    e("s_add_u32 s4, s60, s3")
    e("s_addc_u32 s5, s61, 0")
    e("v_mov_b32 v4, 0")
    for i in range(n):
        r = 64 + 4 * i
        for k in range(4):
            e("v_mov_b32 v%d, s%d" % (8 + k, r + k))
        e("global_store_dwordx4 v4, v[8:11], s[4:5] offset:%d" % (16 * i))
        e("s_nop 1")

def rng(k, r, n=4): return "%s[%d:%d]" % (k, r, r + n - 1)
def wbuf(b, ab, i):
    off = 20 * ab + 4 * i
    return ("v", 32 + off) if b == 0 else ("v", 72 + off) if b == 1 else ("a", 192 + off)
def gf(b): return 144 + 4 * b
def acc(s, t): return ("a", 4 * t) if s == "A" else ("v", 112 + 4 * t)
N8 = [0, 1, 4, 5]
def xread(b):
    pl, k = divmod(b, 3)
    return "ds_read_b128 %s, v%d offset:%d" % (rng("a", gf(b)), 3 if pl % 2 == 0 else 10, (2 * pl + k) * 4608)

def cost_of(ins):
    if ins.startswith("@") or ins.startswith("s_waitcnt") or ins.startswith("s_barrier"): return 0
    if ins.startswith("ds_write_b128"): return 5
    if ins.startswith("ds_write_b64"): return 3
    if ins.startswith("ds_write"): return 2
    if ins.startswith("buffer_store_dwordx4"): return 5
    if ins.startswith("buffer_store"): return 3
    if ins.split()[0] in hz.TRANS: return 2
    return 1
def is_valu(ins): return ins.startswith("v_")

def wloads(sg):
    b = sg % 3
    r = []
    for ab in range(2):
        for i in range(5):
            w = wbuf(b, ab, i)
            tag = " @W%d" % sg if (ab, i) == (1, 4) else ""
            if i < 4: r.append("buffer_load_dwordx4 %s, v1, s[16:19], s%d offen offset:%d%s" % (rng(*w), 34 + ab, 1024 * i, tag))
            else: r.append("buffer_load_dwordx4 %s, v2, s[16:19], s%d offen%s" % (rng(*w), 34 + ab, tag))
    return r

class Seg:
    CAP = 2
    def __init__(s, name, vtags=None):
        s.name = name; s.mf = []; s.fill = []; s.used = []; s.burst = {}; s.touch = {}; s.ss0 = {}; s.seq = 0
        s.vtags = dict(vtags or {}); s.labels = {}
    def slot(s, ins, a):
        s.touch.setdefault(a, []).append(len(s.mf))
        s.mf.append(ins); s.fill.append([]); s.used.append(0)
    def put(s, sl, ins, seq=-1):
        s.fill[sl].append((ins, seq)); s.used[sl] += cost_of(ins)
    def superstep(s, sg, aset, vm=None, xswitch=None, wstart=3, wgap=3):
        b = sg % 3
        base = len(s.mf); s.ss0[sg] = base
        for bu in range(12):
            pl, k = divmod(bu, 3)
            s.burst[(sg, bu)] = len(s.mf)
            x = rng("a", gf(bu))
            work = [(1, 2 * pl)] if k == 0 else [(0, 2 * pl), (1, 2 * pl + 1)] if k == 1 else [(0, 2 * pl + 1)]
            for ab, n in work:
                tl = [(ml, ml * 8 + n) for ml in range(4)]
                if n in N8: tl.append((4, 32 + N8.index(n)))
                for wi, t in tl:
                    a = acc(aset, t); w = wbuf(b, ab, wi)
                    s.slot("v_mfma_f32_16x16x32_bf16 %s, %s, %s, %s" % (rng(*a), rng(*w), x, rng(*a)), a)
        assert len(s.mf) - base == 72
        s.ss0[sg + 1] = len(s.mf)
        s.put(base, "@vwait W%d" % sg if vm is None else "s_waitcnt vmcnt(%d)" % vm)
        s.put(base, "s_waitcnt lgkmcnt(1)")
        s.put(base + 1, xread(11))
        s.put(s.burst[(sg, 6)], "s_waitcnt lgkmcnt(2)")
        s.put(base + 2, "v_mov_b32 v3, v13")
        s.put(base + 2, "v_mov_b32 v10, v11")
        for bu in range(11):
            s.put(s.burst[(sg, bu + 1)] + 1, xread(bu))
        it = ["v_add_u32 v4, 64, v4", dict(ins="v_cmp_le_u32 vcc, 0x120, v4", gap=3),
              "v_cndmask_b32 v5, 64, v7, vcc", "v_cndmask_b32 v6, 0, v8, vcc"]
        if xswitch: it.append("v_add_u32 v5, %s, v5" % xswitch)
        it += ["v_add_u32 v13, v3, v5", "v_add_u32 v11, v10, v5", "v_sub_u32 v4, v4, v6"]
        s.pour(it, base + 56)
        it = [dict(ins=x, gap=wgap) for x in wloads(sg + 2)] + ["s_add_u32 s34, s34, 18432", "s_add_u32 s35, s35, 18432"]
        return s.pour(it, base + wstart)
    def pour(s, items, start):
        s.seq += 1; seq = s.seq
        p = start
        for it in items:
            if isinstance(it, str): it = dict(ins=it)
            ins = it["ins"]; cost = cost_of(ins)
            p = max(p, it.get("rel", 0))
            while True:
                assert p < len(s.mf), "pour overflow: " + ins
                ok = s.used[p] + cost <= s.CAP or (s.used[p] == 0)
                if ok and not is_valu(ins) and any(is_valu(x) and q == seq for x, q in s.fill[p]): ok = False
                a = it.get("rd") or it.get("wr")
                if ok and a:
                    for t in s.touch.get(a, []):
                        if t < p <= t + 8: ok = False
                        if it.get("wr") and t - 2 < p <= t: ok = False
                if ok: break
                p += 1
            assert p <= it.get("dl", 1 << 30), "deadline miss: %s %d" % (ins, p)
            s.put(p, ins, seq)
            p += it.get("gap", 0)
        return p
    def emit(s):
        lin = []
        for i, (m, f) in enumerate(zip(s.mf, s.fill)):
            if i in s.labels: lin.append(s.labels[i] + ":")
            lin += [x for x, q in f if not is_valu(x)] + [x for x, q in f if is_valu(x)]
            lin.append(m)
        cnt = 0; tags = {}; vc = 0; vt = dict(s.vtags)
        for x in lin:
            if x.startswith("@wait "):
                e("s_waitcnt lgkmcnt(%d)" % min(cnt - tags[x[6:]], 15)); continue
            if x.startswith("@vwait "):
                n = vc - vt[x[7:]]; assert n <= 63
                e("s_waitcnt vmcnt(%d)" % n); continue
            tag = None
            if " @" in x: x, tag = x.split(" @")
            if x.startswith("ds_"): cnt += 1
            if x.startswith("buffer_"): vc += 1
            if tag:
                if x.startswith("ds_"): tags[tag] = cnt
                else: vt[tag] = vc
            e(x)
        over = sum(max(0, u - s.CAP) for u in s.used)
        sys.stderr.write("seg %s: %d mfma, overflow units %d\n" % (s.name, len(s.mf), over))

def t_advance():
    return ["v_add_u32 v173, 4, v173",
            dict(ins="v_cmp_le_u32 s[40:41], 36, v173", gap=2),
            "v_add_u32 v172, 8128, v172",
            "v_cndmask_b32 v175, 0, v176, s[40:41]",
            "v_cndmask_b32 v177, 0, 36, s[40:41]",
            "v_add_u32 v172, v172, v175",
            "v_sub_u32 v173, v173, v177"]
def t_loads(i):
    B = 112 + 8 * (i % 3)
    return ["v_add_u32 v178, 576, v172",
            "v_subrev_u32 v179, 576, v172",
            "buffer_load_dwordx4 %s, v178, s[12:15], 0 offen" % rng("v", B),
            "buffer_load_dwordx4 %s, v179, s[12:15], 0 offen" % rng("v", B + 4)]
def t_compute(i):
    B = 112 + 8 * (i % 3); C = B + 4; A = 136
    r = []
    for k in range(4):
        t = 140 + 6 * (k % 2)
        r += ["v_lshlrev_b32 v%d, 16, v%d" % (t, A + k), "v_and_b32 v%d, s38, v%d" % (t + 1, A + k),
              "v_lshlrev_b32 v%d, 16, v%d" % (t + 2, B + k), "v_and_b32 v%d, s38, v%d" % (t + 3, B + k),
              "v_lshlrev_b32 v%d, 16, v%d" % (t + 4, C + k), "v_and_b32 v%d, s38, v%d" % (t + 5, C + k),
              "v_sub_f32 v%d, v%d, v%d" % (t + 2, t + 2, t), "v_sub_f32 v%d, v%d, v%d" % (t + 3, t + 3, t + 1),
              "v_sub_f32 v%d, v%d, v%d" % (t + 4, t + 4, t), "v_sub_f32 v%d, v%d, v%d" % (t + 5, t + 5, t + 1),
              "v_cvt_pk_bf16_f32 v%d, v%d, v%d" % (164 + k, t + 2, t + 3),
              "v_cvt_pk_bf16_f32 v%d, v%d, v%d" % (168 + k, t + 4, t + 5)]
    return r
def flat(items):
    for it in items:
        if isinstance(it, dict):
            e(it["ins"].split(" @")[0])
            if it.get("gap"): e("s_nop 0")
        else: e(it.split(" @")[0])

po, pkd = gen_prep()
out.append(HDR + '.amdgcn_target "amdgcn-amd-amdhsa--gfx950"\n.text')
out.extend(po)
out.append(".p2align 8\n.globl %s_kernel\n.type %s_kernel,@function" % (NAME, NAME))
lab(NAME + "_kernel")
e("s_cmp_ge_u32 s2, %d" % GRID)
e("s_cbranch_scc1 L_end")
if not NOREMAP:
    c("XCD-friendly remap: logical = (id&7)*32 + (id>>3) ; 252 real")
    e("s_and_b32 s3, s2, 7")
    e("s_lshl_b32 s3, s3, 5")
    e("s_lshr_b32 s2, s2, 3")
    e("s_add_u32 s2, s2, s3")
    e("s_cmp_ge_u32 s2, 252")
    e("s_cbranch_scc1 L_end")
stamp("a")
e("s_load_dwordx2 s[4:5], s[0:1], 0")
e("s_load_dwordx2 s[10:11], s[0:1], 24")
e("s_load_dwordx2 s[60:61], s[0:1], 40")
e("v_lshrrev_b32 v1, 6, v0")
e("v_mov_b32 v19, v0")
e("v_and_b32 v0, 63, v0")
e("v_readfirstlane_b32 s28, v1")
e("s_cmp_ge_u32 s2, 126")
e("s_cselect_b32 s32, 1, 0")
e("s_mul_i32 s3, s32, 126")
e("s_sub_u32 s33, s2, s3")
e("s_and_b32 s39, s33, 1")
e("s_lshl_b32 s31, s33, 7")
e("s_sub_u32 s31, s31, 128")
e("s_and_b32 s29, s28, 1")
e("s_lshr_b32 s30, s28, 1")
e("s_lshl_b32 s3, s39, 1")
e("s_add_u32 s3, s3, s30")
e("s_mul_i32 s34, s3, %d" % (54 * 18432))
e("s_add_u32 s35, s34, 9216")
e("s_mov_b32 s38, 0xffff0000")
e("v_lshlrev_b32 v9, 4, v0")
e("s_lshl_b32 s3, s29, 12")
e("v_add_u32 v1, s3, v9")
e("v_add_u32 v2, 8192, v9")
c("transform/DMA addressing")
e("v_mul_u32_u24 v20, 1821, v19")
e("v_lshrrev_b32 v20, 16, v20")
e("v_mul_u32_u24 v21, 36, v20")
e("v_sub_u32 v173, v19, v21")
e("v_mul_u32_u24 v20, 576, v20")
e("v_lshl_add_u32 v20, v19, 4, v20")
e("s_sub_u32 s3, s31, 60")
e("s_mul_i32 s3, s3, 288")
e("v_add_u32 v172, s3, v20")
e("v_mov_b32 v176, 576")
e("v_lshlrev_b32 v174, 4, v19")
e("s_lshl_b32 s42, s28, 10")
e("s_add_u32 s42, s42, %d" % U0)
e("v_mov_b32 v22, v172")
e("v_mov_b32 v23, v173")
e("s_mov_b32 m0, s42")
e("s_mov_b32 s36, 12")
e("s_waitcnt lgkmcnt(0)")
stamp("p")
e("s_mul_i32 s3, s32, 4608000")
e("s_add_u32 s12, s4, s3")
e("s_addc_u32 s13, s5, 0")
e("s_and_b32 s13, s13, 0xffff")
e("s_mov_b32 s14, 4608000")
e("s_mov_b32 s15, 0x20000")
e("s_mov_b32 s16, s60")
e("s_and_b32 s17, s61, 0xffff")
e("s_mov_b32 s18, %d" % WS_END)
e("s_mov_b32 s19, 0x20000")
lab("L_dma")
e("buffer_load_dwordx4 v172, s[12:15], 0 offen lds")
flat(t_advance())
e("s_add_u32 m0, m0, 4096")
e("s_sub_u32 s36, s36, 1")
e("s_cmp_lg_u32 s36, 0")
e("s_cbranch_scc1 L_dma")
stamp("p")
flat(wloads(0))
e("s_add_u32 s34, s34, 18432")
e("s_add_u32 s35, s35, 18432")
stamp("p")
e("v_mov_b32 v172, v22")
e("v_mov_b32 v173, v23")
e("s_mov_b32 s24, s10")
e("s_and_b32 s25, s11, 0xffff")
e("s_mov_b32 s26, 9216000")
e("s_mov_b32 s27, 0x20000")
c("X read addresses")
e("v_and_b32 v20, 15, v0")
e("v_lshrrev_b32 v21, 4, v0")
e("s_lshl_b32 s3, s30, 3")
e("s_sub_u32 s3, 14, s3")
e("v_add_u32 v3, s3, v20")
e("v_mul_u32_u24 v3, 288, v3")
e("v_lshlrev_b32 v4, 4, v21")
e("v_add_u32 v3, v3, v4")
e("s_mul_i32 s3, s29, 9216")
e("s_sub_u32 s37, %d, s3" % U0)
e("s_add_u32 s3, s3, %d" % U0)
e("v_add_u32 v10, s37, v3")
e("v_add_u32 v3, s3, v3")
e("v_add_u32 v13, 64, v3")
e("v_add_u32 v11, 64, v10")
e("v_add_u32 v4, 64, v4")
e("v_mov_b32 v7, -800")
e("v_mov_b32 v8, 288")
c("array jumps: s43 (P->2), s44 (2->3)")
e("s_cmp_eq_u32 s30, 0")
e("s_mov_b32 s3, %d" % (D1 - U0 + 2304))
e("s_cselect_b32 s43, %d, s3" % (D0 - U0 + 2304))
e("s_mov_b32 s3, %d" % (ARR + 2304))
e("s_cselect_b32 s44, %d, s3" % (2304 - ARR))
c("zero the AGPR accumulators with MFMA")
for r in range(4): e("v_mov_b32 v%d, 0" % (24 + r))
e("s_nop 1")
for t in range(36):
    e("v_mfma_f32_16x16x32_bf16 %s, v[24:27], v[24:27], 0" % rng("a", 4 * t))
stamp("p")
e("s_waitcnt vmcnt(10)")
stamp("p")
e("s_barrier")
stamp("a")
for bu in range(11): e(xread(bu))
flat(wloads(1))
e("s_add_u32 s34, s34, 18432")
e("s_add_u32 s35, s35, 18432")
NPF = 0
if not NOPF:
    c("prefetch the rest of the code into L2")
    e("s_getpc_b64 s[46:47]")
    lab("L_pc")
    e("v_lshlrev_b32 v20, 2, v174")
    e("v_add_u32 v20, L_pt-L_pc, v20")
    e("v_add_u32 v22, 16384, v20")
    e("v_min_u32 v20, L_codeend-L_pc-4, v20")
    e("v_min_u32 v22, L_codeend-L_pc-4, v22")
    NPF = 2
    e("global_load_dword v21, v20, s[46:47]")
    e("global_load_dword v21, v22, s[46:47]")
e("s_mov_b32 s36, 5")
e("s_waitcnt vmcnt(%d)" % (10 + NPF))

def loop_end(label):
    e("s_sub_u32 s36, s36, 1")
    e("s_cmp_lg_u32 s36, 0")
    e("s_cbranch_scc1 %s" % label)

out.append(".p2align 6")
lab("L_pt")
s = Seg("pt")
for b in range(3):
    s.superstep(b, "A", vm=12 + NPF)
for b in range(3):
    base = s.ss0[b]
    items = ["v_add_u32 v180, %d, v174" % (U0 - D1), dict(ins="ds_read_b128 v[136:139], v180 @ta%d" % b, gap=8), "@wait ta%d" % b] + t_compute(b)
    items += t_loads(b)
    items += ["ds_write_b64 v174, v[164:165]", "ds_write_b64 v174, v[166:167] offset:8",
              "ds_write_b64 v174, v[168:169] offset:%d" % ARR, "ds_write_b64 v174, v[170:171] offset:%d" % (ARR + 8),
              "v_add_u32 v174, 4096, v174"] + t_advance()
    p = s.pour(items, base + 3); assert p < base + 72, p - base
s.emit()
loop_end("L_pt")
e("s_waitcnt lgkmcnt(0)")
e("s_barrier")
stamp()
e("s_mov_b32 s36, 1")
e("s_mov_b32 s45, 0")
out.append(".p2align 6")
lab("L_pa")
s = Seg("pa")
for b in range(3):
    s.superstep(b, "A", vm=10, xswitch="s37" if b == 1 else None)
s.pour(["s_cmp_eq_u32 s36, 1", "s_cselect_b32 s37, s43, 0"], 44)
s.emit()
loop_end("L_pa")
e("s_cmp_lg_u32 s45, 0")
e("s_cbranch_scc1 L_x")
c("copy P into the keep set")
e("s_barrier")
order = sorted(range(36), key=lambda t: s.touch[acc("A", t)][-1])
for t in order:
    for r in range(4):
        e("v_accvgpr_read_b32 v%d, a%d" % (112 + 4 * t + r, 4 * t + r))
e("s_mov_b32 s36, 6")
e("s_mov_b32 s45, 1")
e("s_mov_b32 s43, s44")
e("s_mul_i32 s46, s28, 12288")
e("s_add_u32 s46, s46, %d" % U0)
e("v_add_u32 v14, s46, v9")
e("s_xor_b32 s47, s28, 2")
e("s_mul_i32 s47, s47, 12288")
e("s_add_u32 s46, s47, %d" % U0)
e("s_add_u32 s47, s47, %d" % WS_WO)
e("v_add_u32 v15, s46, v9")
stamp()
e("s_branch L_pa")
lab("L_x")
stamp()
s = Seg("x")
for sg in range(36, 40):
    s.superstep(sg, "V", vm=10)
ss = lambda sg: s.ss0[sg]
col = lambda n: [ml * 8 + n for ml in range(4)]
rounds = [col(4) + col(6) + col(0), col(5) + col(7) + col(1), [34, 35] + col(3) + [32, 33] + col(2)]
def wr(r, i, reg):
    t = rounds[r][i]
    return [dict(ins="ds_write_b128 v%d, %s offset:%d" % (reg, rng("a", 4 * t), 1024 * i))]
s.pour([x for i in range(12) for x in wr(0, (i + 8) % 12, 14)], ss(36) + 4)
for r in range(1, 4):
    sg = 36 + r
    s.put(ss(sg), "s_waitcnt lgkmcnt(0)"); s.put(ss(sg), "s_barrier")
    reg = 15 if r % 2 == 1 else 14
    items = []
    def rd(gq):
        for i in range(2):
            items.append("ds_read_b128 %s, v%d offset:%d @x%d_%d" % (rng("v", 16 + 8 * (gq % 2) + 4 * i - (2 if False else 0)), reg, 1024 * (2 * gq + i), r, gq))
    rd(0); rd(1)
    items[-1] = dict(ins=items[-1], gap=5)
    for gq in range(6):
        items.append("@wait x%d_%d" % (r, gq))
        for i in range(2):
            t = rounds[r - 1][2 * gq + i]
            for k in range(4):
                items.append(dict(ins="v_add_f32 v%d, v%d, v%d" % (112 + 4 * t + k, 112 + 4 * t + k, 16 + 8 * (gq % 2) + 4 * i + k), wr=acc("V", t)))
        if gq + 2 < 6: rd(gq + 2)
        if r < 3:
            for i in range(2): items += wr(r, 2 * gq + i, reg)
    p = s.pour(items, ss(sg) + 1)
    assert p < ss(sg + 1) - (0 if r < 3 else 3), (r, p - ss(sg))
s.emit()
e("s_mov_b32 s36, 5")
e("s_waitcnt vmcnt(10)")
stamp()
e("s_branch L_pv1")
out.append(".p2align 6")
lab("L_pv")
s = Seg("pv")
s.superstep(0, "V", vm=10, wstart=12)
s.superstep(1, "V", vm=13)
s.superstep(2, "V", vm=10)
s.labels[72] = "L_pv1"
it = []
for i in range(3):
    it += [dict(ins="s_mov_b32 m0, s46", gap=1), "buffer_load_dwordx4 v9, s[16:19], s47 offen lds", "s_add_u32 s46, s46, 1024", dict(ins="s_add_u32 s47, s47, 1024", gap=1)]
p = s.pour(it, 1); assert p <= 12, p
s.pour(["s_cmp_eq_u32 s36, 1", "s_cselect_b32 s34, 0x7f000000, s34", "s_cselect_b32 s35, 0x7f000000, s35"], 48)
s.emit()
loop_end("L_pv")
stamp()

def act_tile(R, z):
    return [
        "v_pk_mul_f32 v[%d:%d], v[%d:%d], s[50:51]" % (R, R + 1, R, R + 1),
        "v_pk_mul_f32 v[%d:%d], v[%d:%d], s[52:53]" % (R + 2, R + 3, R + 2, R + 3),
        "v_exp_f32 v%d, v%d" % (R, R), "v_exp_f32 v%d, v%d" % (R + 1, R + 1),
        "v_exp_f32 v%d, v%d" % (R + 2, R + 2), "v_exp_f32 v%d, v%d" % (R + 3, R + 3),
        "v_pk_add_f32 v[%d:%d], v[%d:%d], s[54:55]" % (R, R + 1, R, R + 1),
        "v_rcp_f32 v%d, v%d" % (R, R),
        "v_pk_add_f32 v[%d:%d], v[%d:%d], s[54:55]" % (R + 2, R + 3, R + 2, R + 3),
        "v_rcp_f32 v%d, v%d" % (R + 1, R + 1),
        "v_rcp_f32 v%d, v%d" % (R + 2, R + 2), "v_rcp_f32 v%d, v%d" % (R + 3, R + 3),
        "v_pk_fma_f32 v[%d:%d], v[%d:%d], s[56:57], v[28:29]" % (R, R + 1, R, R + 1),
        "v_pk_mul_f32 v[%d:%d], v[%d:%d], v[%d:%d]" % (R, R + 1, R, R + 1, R + 2, R + 3),
        "v_cvt_pk_bf16_f32 v%d, v%d, v%d" % (z, R, R + 1),
    ]
for x in ["s_mov_b32 s50, 0x4038aa3b", "s_mov_b32 s51, 0x4038aa3b", "s_mov_b32 s52, 0xbfb8aa3b", "s_mov_b32 s53, 0xbfb8aa3b",
       "s_mov_b32 s54, 1.0", "s_mov_b32 s55, 1.0", "s_mov_b32 s56, -2.0", "s_mov_b32 s57, -2.0",
       "v_mov_b32 v28, 1.0", "v_mov_b32 v29, 1.0",
       "s_mul_i32 s47, s2, 18432", "s_add_u32 s47, s47, %d" % WS_Z,
       "s_lshl_b32 s3, s28, 12", "s_add_u32 s45, s47, s3", "s_lshl_b32 s43, s29, 11",
       "s_sub_u32 s44, s45, s43", "s_add_u32 s45, s45, s43",
       "s_lshl_b32 s3, s28, 9", "s_add_u32 s46, s47, s3", "s_add_u32 s46, s46, 16384",
       "v_lshlrev_b32 v12, 3, v0", "s_waitcnt vmcnt(0)"]: e(x)
c("activation: partner-destined tiles (local 0..3)")
for n in range(4):
    for ml in range(4):
        for x in act_tile(112 + 4 * (ml * 8 + n), 32 + 4 * n + ml): e(x)
    e("buffer_store_dwordx4 %s, v9, s[16:19], s%d offen offset:%d sc1" % (rng("v", 32 + 4 * n), 45 if n < 2 else 44, 1024 * n))
for k in range(2):
    for x in act_tile(112 + 4 * (32 + k), 64 + k): e(x)
e("buffer_store_dwordx2 v[64:65], v12, s[16:19], s46 offen sc1")
for x in ["s_lshl_b32 s3, s28, 11", "v_add_u32 v14, s3, v9", "s_xor_b32 s3, s3, 2048", "v_add_u32 v15, s3, v9"]: e(x)
c("sibling-destined tiles (local 6,7)")
for u in range(2):
    n = 6 + u
    for ml in range(4):
        for x in act_tile(112 + 4 * (ml * 8 + n), 32 + 4 * n + ml): e(x)
    e("ds_write_b128 v14, %s offset:%d" % (rng("v", 32 + 4 * n), 1024 * u))
for x in ["s_lshl_b32 s3, s30, 13", "s_add_u32 s48, s47, s3", "s_add_u32 s48, s48, 18432", "s_add_u32 s48, s48, s43",
       "s_add_u32 s49, s48, 4096", "s_add_u32 s58, s46, 18432",
       "s_lshl_b32 s59, s2, 7", "s_add_u32 s59, s59, %d" % WS_FLAG,
       "v_mov_b32 v26, 0", "v_mov_b32 v27, 1",
       "s_lshl_b32 s3, s39, 1", "s_add_u32 s3, s3, s29", "s_lshl_b32 s3, s3, 10", "s_add_u32 s3, s3, %d" % U0,
       "v_add_u32 v16, s3, v9", "s_xor_b32 s3, s3, 1024", "v_add_u32 v17, s3, v9",
       "s_xor_b32 s3, s39, 1", "s_lshl_b32 s3, s3, 11", "s_add_u32 s3, s3, %d" % U0, "v_add_u32 v18, s3, v9",
       "s_mul_i32 s3, s39, 4608", "s_add_u32 s3, s3, %d" % (U0 + 36864), "v_add_u32 v19, s3, v12"]: e(x)
e("s_waitcnt vmcnt(0) lgkmcnt(0)")
e("s_barrier")
e("s_cmp_lg_u32 s28, 0")
e("s_cbranch_scc1 L_noflag")
e("s_mov_b64 exec, 1")
e("buffer_store_dword v27, v26, s[16:19], s59 offen sc1")
e("s_mov_b64 exec, -1")
lab("L_noflag")
e("s_cmp_eq_u32 s33, 125")
e("s_cbranch_scc1 L_end")
stamp()
for u in range(2):
    e("ds_read_b128 %s, v15 offset:%d" % (rng("v", 72 + 4 * u), 1024 * u))
wo = []
for k in range(4):
    for no in range(9):
        wo.append("ds_read_b128 %s, v%d offset:%d" % (rng("a", (no * 4 + k) * 4), 16 + min(k, 2), no * 4096 + (1024 if k == 3 else 0)))
for no in range(9):
    wo.append("ds_read_b64 %s, v19 offset:%d" % (rng("a", 232 + 2 * no, 2), no * 512))
c("own tiles (local 4,5)")
k = 0
for u in range(2):
    n = 4 + u
    for t, z in [(ml * 8 + n, 32 + 4 * n + ml) for ml in range(4)] + [(34 + u, 66 + 2 * u)]:
        for x in wo[k:k + 5]: e(x)
        k += 5
        for x in act_tile(112 + 4 * t, z): e(x)
e("s_add_u32 s59, s59, 128")
e("s_mov_b32 s36, 0x4000")
e("buffer_load_dword v30, v26, s[16:19], s59 offen sc1")
for x in ["v_and_b32 v20, 15, v0", "v_lshrrev_b32 v21, 4, v0",
       "v_lshrrev_b32 v22, 1, v20", "v_lshlrev_b32 v22, 2, v22", "v_and_b32 v23, 1, v20", "v_add_u32 v22, v22, v23",
       "s_mul_i32 s3, s32, 16000", "s_add_u32 s3, s3, s31", "s_add_u32 s3, s3, %d" % (128 + 2),
       "s_lshl_b32 s62, s29, 6", "s_add_u32 s3, s3, s62",
       "s_lshl_b32 s62, s30, 1", "s_sub_u32 s3, s3, s62",
       "v_add_u32 v22, s3, v22", "v_mul_u32_u24 v22, 288, v22",
       "v_lshl_add_u32 v24, v21, 4, v22", "v_lshl_add_u32 v25, v21, 3, v22", "s_movk_i32 s62, 9216"]: e(x)
e("s_waitcnt lgkmcnt(0)")
a2 = lambda u, no: 112 + (u * 9 + no) * 4
c("GEMM2 own half")
for k in range(2):
    for no in range(9):
        for u in range(2):
            z = (32 + 4 * (4 + u)) if k == 0 else 72 + 4 * u
            d = rng("v", a2(u, no))
            e("v_mfma_f32_16x16x32_bf16 %s, %s, %s, %s" % (d, rng("a", (no * 4 + k) * 4), rng("v", z), "0" if k == 0 else d))
c("poll partner flag")
lab("L_poll")
e("s_waitcnt vmcnt(0)")
e("v_readfirstlane_b32 s3, v30")
e("s_cmp_lg_u32 s3, 0")
e("s_cbranch_scc1 L_go")
e("buffer_load_dword v30, v26, s[16:19], s59 offen sc1")
e("s_sub_u32 s36, s36, 1")
e("s_cmp_lg_u32 s36, 0")
e("s_cbranch_scc1 L_poll")
lab("L_go")
for u in range(2):
    e("buffer_load_dwordx4 %s, v9, s[16:19], s48 offen offset:%d sc1" % (rng("v", 80 + 8 * u), 1024 * u))
    e("buffer_load_dwordx4 %s, v9, s[16:19], s49 offen offset:%d sc1" % (rng("v", 84 + 8 * u), 1024 * u))
    e("buffer_load_dword v%d, v12, s[16:19], s58 offen offset:%d sc1" % (67 + 2 * u, 4 * u))
for u in range(2):
    e("s_waitcnt vmcnt(%d)" % (3 if u == 0 else 5))
    for k in range(2, 5):
        for no in range(9):
            d = rng("v", a2(u, no))
            if k < 4:
                e("v_mfma_f32_16x16x32_bf16 %s, %s, %s, %s" % (d, rng("a", (no * 4 + k) * 4), rng("v", 80 + 8 * u + 4 * (k - 2)), d))
            else:
                e("v_mfma_f32_16x16x16_bf16 %s, %s, %s, %s" % (d, rng("a", 232 + 2 * no, 2), rng("v", 66 + 2 * u, 2), d))
    so = "0" if u == 0 else "s62"
    for P in range(4):
        o = 184 + (u * 5 + P) * 4
        if P == 3: e("s_nop 3")
        for ee in range(2):
            d = a2(u, 2 * P + ee)
            e("v_cvt_pk_bf16_f32 v%d, v%d, v%d" % (o + 2 * ee, d, d + 1))
            e("v_cvt_pk_bf16_f32 v%d, v%d, v%d" % (o + 2 * ee + 1, d + 2, d + 3))
        e("buffer_store_dwordx4 %s, v24, s[24:27], %s offen offset:%d" % (rng("v", o), so, 64 * P))
    o = 184 + (u * 5 + 4) * 4
    d = a2(u, 8)
    e("v_cvt_pk_bf16_f32 v%d, v%d, v%d" % (o, d, d + 1))
    e("v_cvt_pk_bf16_f32 v%d, v%d, v%d" % (o + 1, d + 2, d + 3))
    e("buffer_store_dwordx2 %s, v25, s[24:27], %s offen offset:256" % (rng("v", o, 2), so))
if STAMPS:
    e("s_waitcnt vmcnt(0)")
    stamp("a")
    stamp_flush(nst[0])
    sys.stderr.write("stamps %d\n" % nst[0])
lab("L_end")
e("s_endpgm")
lab("L_codeend")
out.append('.section .rodata,"a"\n.p2align 6\n' + pkd + """
.p2align 6
.amdhsa_kernel %s_kernel
  .amdhsa_next_free_vgpr 512
  .amdhsa_next_free_sgpr 102
  .amdhsa_accum_offset 256
  .amdhsa_group_segment_fixed_size 0
  .amdhsa_kernarg_size 48
  .amdhsa_user_sgpr_count 2
  .amdhsa_user_sgpr_kernarg_segment_ptr 1
  .amdhsa_system_sgpr_workgroup_id_x 1
.end_amdhsa_kernel""" % NAME)
lines = "\n".join(out).split("\n")
errs = hz.check(lines)
for x in errs[:40]: sys.stderr.write(x + "\n")
txt = "\n".join(lines) + "\n"
sys.stderr.write("%d hazards, %d bytes\n" % (len(errs), len(txt)))
args = [a for a in sys.argv[1:] if not a.startswith("--")]
open(args[0] if args else "cdna_kernels/%s.s" % NAME, "w").write(txt)
```

```python
import sys, re
WS_W = 0
WS_WO = 0x400000
WS_WO8 = WS_WO + 36864
WS_F1 = 0x420000
WS_F2 = 0x421000
WS_F3 = 0x422000
WS_Z = 0x440000
WS_END = WS_Z + 252 * 18432
import hz

NAME = "standalone__autoregressive_conv_wavenet__speech"
STAMPS = "--stamps" in sys.argv
PST = "--pst" in sys.argv
NOREMAP = "--noremap" in sys.argv
NOPF = "--nopf" in sys.argv
GRID = 252 if NOREMAP else 256
HDR = """; Kernarg layout for this problem (48 bytes, ptrs only, base s[0:1]):
;   offset   0: d_in[0] x  shape=(2, 16000, 144) dtype=bfloat16 strides=(4608000, 288, 2) contiguous=True
;   offset   8: d_in[1] w  shape=(31, 144, 288) dtype=bfloat16 strides=(82944, 576, 2) contiguous=True
;   offset  16: d_in[2] w_o  shape=(144, 144) dtype=bfloat16 strides=(288, 2) contiguous=True
;   offset  24: d_out     shape=(2, 16000, 144) dtype=bfloat16 (2 bytes/elem)
;   offset  32: d_debug   256 bytes
;   offset  40: d_ws      268435456 bytes workspace
; @launch grid=(%d,1,1) block=(256,1,1) lds=163840
""" % GRID

out = []
def e(s): out.append(s)
def lab(s): out.append(s + ":")
def c(s): out.append("; " + s)

ARR = 49152
D1 = 12288
D0 = D1 + ARR
U0 = D0 + ARR
WS_ST = 0x1000000
nst = [0]
def stamp_ins():
    r = 64 + 4 * nst[0]
    nst[0] += 1
    return ["s_memtime s[%d:%d]" % (r, r + 1), "s_memrealtime s[%d:%d]" % (r + 2, r + 3), "s_waitcnt lgkmcnt(0)"]
def stamp(kind="m"):
    if not STAMPS: return
    if kind == "p" and not PST: return
    if kind == "m" and PST: return
    for x in stamp_ins(): e(x)
def stamp_flush(n):
    e("s_lshl_b32 s3, s2, 2")
    e("s_add_u32 s3, s3, s28")
    e("s_mul_i32 s3, s3, %d" % (n * 16))
    e("s_add_u32 s3, s3, %d" % WS_ST)
    e("s_add_u32 s4, s60, s3")
    e("s_addc_u32 s5, s61, 0")
    e("v_mov_b32 v4, 0")
    for i in range(n):
        r = 64 + 4 * i
        for k in range(4):
            e("v_mov_b32 v%d, s%d" % (8 + k, r + k))
        e("global_store_dwordx4 v4, v[8:11], s[4:5] offset:%d" % (16 * i))
        e("s_nop 1")

def rng(k, r, n=4): return "%s[%d:%d]" % (k, r, r + n - 1)
def wbuf(b, ab, i):
    off = 20 * ab + 4 * i
    return ("v", 32 + off) if b == 0 else ("v", 72 + off) if b == 1 else ("a", 192 + off)
def gf(b): return 144 + 4 * b
def acc(s, t): return ("a", 4 * t) if s == "A" else ("v", 112 + 4 * t)
N8 = [0, 1, 4, 5]
def xread(b):
    pl, k = divmod(b, 3)
    return "ds_read_b128 %s, v%d offset:%d" % (rng("a", gf(b)), 3 if pl % 2 == 0 else 10, (2 * pl + k) * 4608)

def cost_of(ins):
    if ins.startswith("@") or ins.startswith("s_waitcnt") or ins.startswith("s_barrier"): return 0
    if ins.startswith("ds_write_b128"): return 5
    if ins.startswith("ds_write_b64"): return 3
    if ins.startswith("ds_write"): return 2
    if ins.startswith("buffer_store_dwordx4"): return 5
    if ins.startswith("buffer_store"): return 3
    if ins.split()[0] in hz.TRANS: return 2
    return 1
def is_valu(ins): return ins.startswith("v_")

def wloads(sg):
    b = sg % 3
    r = []
    for ab in range(2):
        for i in range(5):
            w = wbuf(b, ab, i)
            tag = " @W%d" % sg if (ab, i) == (1, 4) else ""
            if i < 4: r.append("buffer_load_dwordx4 %s, v1, s[16:19], s%d offen offset:%d sc1%s" % (rng(*w), 34 + ab, 1024 * i, tag))
            else: r.append("buffer_load_dwordx4 %s, v2, s[16:19], s%d offen sc1%s" % (rng(*w), 34 + ab, tag))
    return r

class Seg:
    CAP = 2
    def __init__(s, name, vtags=None):
        s.name = name; s.mf = []; s.fill = []; s.used = []; s.burst = {}; s.touch = {}; s.ss0 = {}; s.seq = 0
        s.vtags = dict(vtags or {}); s.labels = {}
    def slot(s, ins, a):
        s.touch.setdefault(a, []).append(len(s.mf))
        s.mf.append(ins); s.fill.append([]); s.used.append(0)
    def put(s, sl, ins, seq=-1):
        s.fill[sl].append((ins, seq)); s.used[sl] += cost_of(ins)
    def superstep(s, sg, aset, vm=None, xswitch=None, wstart=3, wgap=3):
        b = sg % 3
        base = len(s.mf); s.ss0[sg] = base
        for bu in range(12):
            pl, k = divmod(bu, 3)
            s.burst[(sg, bu)] = len(s.mf)
            x = rng("a", gf(bu))
            work = [(1, 2 * pl)] if k == 0 else [(0, 2 * pl), (1, 2 * pl + 1)] if k == 1 else [(0, 2 * pl + 1)]
            for ab, n in work:
                tl = [(ml, ml * 8 + n) for ml in range(4)]
                if n in N8: tl.append((4, 32 + N8.index(n)))
                for wi, t in tl:
                    a = acc(aset, t); w = wbuf(b, ab, wi)
                    s.slot("v_mfma_f32_16x16x32_bf16 %s, %s, %s, %s" % (rng(*a), rng(*w), x, rng(*a)), a)
        assert len(s.mf) - base == 72
        s.ss0[sg + 1] = len(s.mf)
        s.put(base, "@vwait W%d" % sg if vm is None else "s_waitcnt vmcnt(%d)" % vm)
        s.put(base, "s_waitcnt lgkmcnt(1)")
        s.put(base + 1, xread(11))
        s.put(s.burst[(sg, 6)], "s_waitcnt lgkmcnt(2)")
        s.put(base + 2, "v_mov_b32 v3, v13")
        s.put(base + 2, "v_mov_b32 v10, v11")
        for bu in range(11):
            s.put(s.burst[(sg, bu + 1)] + 1, xread(bu))
        it = ["v_add_u32 v4, 64, v4", dict(ins="v_cmp_le_u32 vcc, 0x120, v4", gap=3),
              "v_cndmask_b32 v5, 64, v7, vcc", "v_cndmask_b32 v6, 0, v8, vcc"]
        if xswitch: it.append("v_add_u32 v5, %s, v5" % xswitch)
        it += ["v_add_u32 v13, v3, v5", "v_add_u32 v11, v10, v5", "v_sub_u32 v4, v4, v6"]
        s.pour(it, base + 56)
        it = [dict(ins=x, gap=wgap) for x in wloads(sg + 2)] + ["s_add_u32 s34, s34, 18432", "s_add_u32 s35, s35, 18432"]
        return s.pour(it, base + wstart)
    def pour(s, items, start):
        s.seq += 1; seq = s.seq
        p = start
        for it in items:
            if isinstance(it, str): it = dict(ins=it)
            ins = it["ins"]; cost = cost_of(ins)
            p = max(p, it.get("rel", 0))
            while True:
                assert p < len(s.mf), "pour overflow: " + ins
                ok = s.used[p] + cost <= s.CAP or (s.used[p] == 0)
                if ok and not is_valu(ins) and any(is_valu(x) and q == seq for x, q in s.fill[p]): ok = False
                a = it.get("rd") or it.get("wr")
                if ok and a:
                    for t in s.touch.get(a, []):
                        if t < p <= t + 8: ok = False
                        if it.get("wr") and t - 2 < p <= t: ok = False
                if ok: break
                p += 1
            assert p <= it.get("dl", 1 << 30), "deadline miss: %s %d" % (ins, p)
            s.put(p, ins, seq)
            p += it.get("gap", 0)
        return p
    def emit(s):
        lin = []
        for i, (m, f) in enumerate(zip(s.mf, s.fill)):
            if i in s.labels: lin.append(s.labels[i] + ":")
            lin += [x for x, q in f if not is_valu(x)] + [x for x, q in f if is_valu(x)]
            lin.append(m)
        cnt = 0; tags = {}; vc = 0; vt = dict(s.vtags)
        for x in lin:
            if x.startswith("@wait "):
                e("s_waitcnt lgkmcnt(%d)" % min(cnt - tags[x[6:]], 15)); continue
            if x.startswith("@vwait "):
                n = vc - vt[x[7:]]; assert n <= 63
                e("s_waitcnt vmcnt(%d)" % n); continue
            tag = None
            if " @" in x: x, tag = x.split(" @")
            if x.startswith("ds_"): cnt += 1
            if x.startswith("buffer_"): vc += 1
            if tag:
                if x.startswith("ds_"): tags[tag] = cnt
                else: vt[tag] = vc
            e(x)
        over = sum(max(0, u - s.CAP) for u in s.used)
        sys.stderr.write("seg %s: %d mfma, overflow units %d\n" % (s.name, len(s.mf), over))

def t_advance():
    return ["v_add_u32 v173, 4, v173",
            dict(ins="v_cmp_le_u32 s[40:41], 36, v173", gap=2),
            "v_add_u32 v172, 8128, v172",
            "v_cndmask_b32 v175, 0, v176, s[40:41]",
            "v_cndmask_b32 v177, 0, 36, s[40:41]",
            "v_add_u32 v172, v172, v175",
            "v_sub_u32 v173, v173, v177"]
def t_loads(i):
    B = 112 + 8 * (i % 3)
    return ["v_add_u32 v178, 576, v172",
            "v_subrev_u32 v179, 576, v172",
            "buffer_load_dwordx4 %s, v178, s[12:15], 0 offen" % rng("v", B),
            "buffer_load_dwordx4 %s, v179, s[12:15], 0 offen" % rng("v", B + 4)]
def t_compute(i):
    B = 112 + 8 * (i % 3); C = B + 4; A = 136
    r = []
    for k in range(4):
        t = 140 + 6 * (k % 2)
        r += ["v_lshlrev_b32 v%d, 16, v%d" % (t, A + k), "v_and_b32 v%d, s38, v%d" % (t + 1, A + k),
              "v_lshlrev_b32 v%d, 16, v%d" % (t + 2, B + k), "v_and_b32 v%d, s38, v%d" % (t + 3, B + k),
              "v_lshlrev_b32 v%d, 16, v%d" % (t + 4, C + k), "v_and_b32 v%d, s38, v%d" % (t + 5, C + k),
              "v_sub_f32 v%d, v%d, v%d" % (t + 2, t + 2, t), "v_sub_f32 v%d, v%d, v%d" % (t + 3, t + 3, t + 1),
              "v_sub_f32 v%d, v%d, v%d" % (t + 4, t + 4, t), "v_sub_f32 v%d, v%d, v%d" % (t + 5, t + 5, t + 1),
              "v_cvt_pk_bf16_f32 v%d, v%d, v%d" % (164 + k, t + 2, t + 3),
              "v_cvt_pk_bf16_f32 v%d, v%d, v%d" % (168 + k, t + 4, t + 5)]
    return r
def flat(items):
    for it in items:
        if isinstance(it, dict):
            e(it["ins"].split(" @")[0])
            if it.get("gap"): e("s_nop 0")
        else: e(it.split(" @")[0])

TSPLIT = int(([a.split("=")[1] for a in sys.argv if a.startswith("--tsplit=")] or ["6"])[0])
out.append(HDR + '.amdgcn_target "amdgcn-amd-amdhsa--gfx950"\n.text')
out.append(".p2align 8\n.globl %s_kernel\n.type %s_kernel,@function" % (NAME, NAME))
lab(NAME + "_kernel")
e("s_cmp_ge_u32 s2, %d" % GRID)
e("s_cbranch_scc1 L_end")
if not NOREMAP:
    c("XCD-friendly remap: logical = (id&7)*32 + (id>>3) ; 252 real")
    e("s_and_b32 s3, s2, 7")
    e("s_lshl_b32 s3, s3, 5")
    e("s_lshr_b32 s2, s2, 3")
    e("s_add_u32 s2, s2, s3")
    e("s_cmp_ge_u32 s2, 252")
    e("s_cbranch_scc1 L_end")
stamp("a")
e("s_load_dwordx8 s[4:11], s[0:1], 0")
e("s_load_dwordx4 s[56:59], s[0:1], 32")
e("v_lshrrev_b32 v1, 6, v0")
e("v_mov_b32 v19, v0")
e("v_and_b32 v0, 63, v0")
e("v_readfirstlane_b32 s28, v1")
e("v_lshlrev_b32 v9, 4, v0")
c("production unit: gw = 4*wg + wave")
e("s_lshl_b32 s63, s2, 2")
e("s_add_u32 s63, s63, s28")
e("s_mul_i32 s3, s63, 21846")
e("s_lshr_b32 s48, s3, 16")
e("s_mul_i32 s3, s48, 3")
e("s_sub_u32 s49, s63, s3")
e("s_mul_i32 s3, s48, 3641")
e("s_lshr_b32 s50, s3, 16")
e("s_mul_i32 s3, s50, 18")
e("s_sub_u32 s51, s48, s3")
e("s_mul_i32 s52, s50, 165888")
e("s_mul_i32 s3, s51, 4608")
e("s_add_u32 s52, s52, s3")
e("s_add_u32 s53, s52, 82944")
e("s_mul_i32 s3, s49, 6")
e("v_lshrrev_b32 v20, 3, v0")
e("v_add_u32 v20, s3, v20")
e("v_and_b32 v21, 6, v0")
e("v_lshl_add_u32 v21, v20, 3, v21")
e("v_and_b32 v22, 1, v0")
e("v_mul_u32_u24 v22, 144, v22")
e("v_add_lshl_u32 v24, v21, v22, 1")
e("s_waitcnt lgkmcnt(0)")
stamp("p")
e("s_mov_b32 s20, s6")
e("s_and_b32 s21, s7, 0xffff")
e("s_mov_b32 s22, 2571264")
e("s_mov_b32 s23, 0x20000")
e("s_mov_b32 s44, s56")
e("s_and_b32 s45, s57, 0xffff")
e("s_mov_b32 s46, 256")
e("s_mov_b32 s47, 0x20000")
e("v_mov_b32 v30, 0")
e("s_cmp_lg_u32 s63, 1007")
e("s_cbranch_scc1 L_noep")
c("the last wave (idle in production) publishes a launch-unique tag")
e("s_memrealtime s[40:41]")
e("s_waitcnt lgkmcnt(0)")
e("s_or_b32 s40, s40, 1")
e("v_mov_b32 v29, s40")
e("s_mov_b64 exec, 1")
e("buffer_store_dword v29, v30, s[44:47], 0 offen sc1")
e("s_mov_b64 exec, -1")
e("s_waitcnt vmcnt(0)")
lab("L_noep")
e("s_cmp_ge_u32 s63, 864")
e("s_cbranch_scc1 L_wo_ld")
e("s_mov_b32 exec_hi, 0xffff")
for r in range(8):
    e("buffer_load_dword v%d, v24, s[20:23], s52 offen offset:%d" % (32 + r, r * 576))
for r in range(8):
    e("buffer_load_dword v%d, v24, s[20:23], s53 offen offset:%d" % (40 + r, r * 576))
e("s_mov_b64 exec, -1")
e("s_branch L_ld_done")
lab("L_wo_ld")
c("w_o units: W = gw-864 (<54)")
e("s_mov_b32 s20, s8")
e("s_and_b32 s21, s9, 0xffff")
e("s_mov_b32 s22, 41472")
e("s_sub_u32 s48, s63, 864")
e("s_lshr_b32 s49, s48, 2")
e("s_sub_u32 s50, s48, 36")
e("s_cmp_ge_i32 s50, 9")
e("s_cselect_b32 s51, 1, 0")
e("s_mul_i32 s3, s51, 9")
e("s_sub_u32 s52, s50, s3")
e("s_cmp_lt_u32 s48, 36")
e("s_cselect_b32 s49, s49, s52")
e("v_and_b32 v20, 15, v0")
e("v_lshrrev_b32 v21, 4, v0")
e("v_lshrrev_b32 v22, 2, v20")
e("v_lshlrev_b32 v22, 4, v22")
e("v_and_b32 v23, 3, v20")
e("v_lshl_add_u32 v22, v23, 1, v22")
e("s_lshr_b32 s3, s49, 1")
e("s_lshl_b32 s3, s3, 6")
e("s_and_b32 s52, s49, 1")
e("s_lshl_b32 s52, s52, 3")
e("s_add_u32 s3, s3, s52")
e("v_lshlrev_b32 v23, 1, v20")
e("s_cmp_eq_u32 s49, 8")
e("s_cselect_b64 vcc, -1, 0")
e("v_cndmask_b32 v22, v22, v23, vcc")
e("v_add_u32 v22, s3, v22")
e("v_mul_u32_u24 v23, 576, v21")
e("v_add_u32 v24, v22, v23")
c("row base: W<36: (72d'+32m')*288 step 8*288 ; else (72*delta+64)*288 step +-72*288")
e("s_and_b32 s3, s48, 3")
e("s_lshr_b32 s52, s3, 1")
e("s_mul_i32 s52, s52, %d" % (72 * 288))
e("s_and_b32 s3, s3, 1")
e("s_mul_i32 s3, s3, %d" % (32 * 288))
e("s_add_u32 s52, s52, s3")
e("s_mul_i32 s53, s51, %d" % (72 * 288))
e("s_add_u32 s53, s53, %d" % (64 * 288))
e("s_cmp_eq_u32 s51, 0")
e("s_mov_b32 s3, %d" % (-72 * 288))
e("s_cselect_b32 s54, %d, s3" % (72 * 288))
e("s_cmp_lt_u32 s48, 36")
e("s_cselect_b32 s52, s52, s53")
e("s_cselect_b32 s54, %d, s54" % (8 * 288))
for i in range(4):
    e("buffer_load_ushort v%d, v24, s[20:23], s52 offen" % (32 + i))
    e("buffer_load_ushort v%d, v24, s[20:23], s52 offen offset:288" % (36 + i))
    if i < 3:
        e("s_add_u32 s52, s52, s54")
        if i == 1:
            e("s_cmp_lt_u32 s48, 36")
            e("s_cselect_b32 s52, s52, 0")
            e("s_cselect_b32 s54, s54, 0")
lab("L_ld_done")
c("tile decode")
e("s_cmp_ge_u32 s2, 126")
e("s_cselect_b32 s32, 1, 0")
e("s_mul_i32 s3, s32, 126")
e("s_sub_u32 s33, s2, s3")
e("s_and_b32 s39, s33, 1")
e("s_lshl_b32 s31, s33, 7")
e("s_sub_u32 s31, s31, 128")
e("s_mul_i32 s3, s32, 4608000")
e("s_add_u32 s12, s4, s3")
e("s_addc_u32 s13, s5, 0")
e("s_and_b32 s13, s13, 0xffff")
e("s_mov_b32 s14, 4608000")
e("s_mov_b32 s15, 0x20000")
c("transform/DMA addressing")
e("v_mul_u32_u24 v25, 1821, v19")
e("v_lshrrev_b32 v25, 16, v25")
e("v_mul_u32_u24 v26, 36, v25")
e("v_sub_u32 v173, v19, v26")
e("v_mul_u32_u24 v25, 576, v25")
e("v_lshl_add_u32 v25, v19, 4, v25")
e("s_sub_u32 s3, s31, 60")
e("s_mul_i32 s3, s3, 288")
e("v_add_u32 v172, s3, v25")
e("v_mov_b32 v176, 576")
e("s_lshl_b32 s42, s28, 10")
e("s_add_u32 s42, s42, %d" % U0)
e("s_mov_b32 m0, s42")
for i in range(12):
    e("v_mov_b32 v%d, v172" % (232 + i))
    e("buffer_load_dwordx4 v172, s[12:15], 0 offen lds")
    if i < 11:
        flat(t_advance())
        e("s_add_u32 m0, m0, 4096")
stamp("p")
e("s_mov_b32 s60, s58"); e("s_mov_b32 s61, s59")
e("s_mov_b32 s16, s58")
e("s_and_b32 s17, s59, 0xffff")
e("s_mov_b32 s18, %d" % WS_END)
e("s_mov_b32 s19, 0x20000")
e("s_mov_b32 s24, s10")
e("s_and_b32 s25, s11, 0xffff")
e("s_mov_b32 s26, 9216000")
e("s_mov_b32 s27, 0x20000")
e("s_mov_b32 s38, 0xffff0000")
e("s_and_b32 s29, s28, 1")
e("s_lshr_b32 s30, s28, 1")
e("s_cmp_ge_u32 s63, 864")
e("s_cbranch_scc1 L_wo_st")
c("W production: dest addressing")
e("s_and_b32 s54, s50, 7")
e("s_lshr_b32 s55, s50, 3")
e("s_mul_i32 s3, s54, 18")
e("s_add_u32 s3, s3, s51")
e("s_lshr_b32 s52, s3, 2")
e("s_and_b32 s53, s3, 3")
e("s_lshr_b32 s54, s54, 2")
e("s_mul_i32 s3, s54, 36")
e("s_add_u32 s3, s3, s52")
e("s_mul_i32 s3, s3, 18432")
e("s_mul_i32 s55, s55, 9216")
e("s_add_u32 s3, s3, s55")
e("s_lshl_b32 s53, s53, 8")
e("s_add_u32 s52, s3, s53")
e("s_cmp_eq_u32 s54, 0")
e("s_cselect_b32 s53, 2, 1")
e("s_cselect_b32 s55, 1, 2")
e("s_mul_i32 s53, s53, %d" % (18 * 18432))
e("s_mul_i32 s55, s55, %d" % (18 * 18432))
e("s_add_u32 s53, s53, s52")
e("s_add_u32 s55, s55, s52")
c("LDS staging (per-wave scratch in the D1 area): write linear dest order, read back 3 tiles x 16 lanes")
e("s_mul_i32 s3, s28, 4608")
e("s_add_u32 s3, s3, %d" % D1)
e("v_lshlrev_b32 v25, 5, v0")
e("v_add_u32 v25, s3, v25")
e("v_add_u32 v26, s3, v9")
e("s_mul_i32 s3, s49, 6")
e("v_lshrrev_b32 v20, 4, v0")
e("v_add_u32 v20, s3, v20")
e("v_add_u32 v21, 3, v20")
e("v_mov_b32 v27, %d" % (1990656 - 9216))
e("v_and_b32 v28, 15, v0")
e("v_lshlrev_b32 v28, 4, v28")
for h in range(2):
    e("v_cmp_le_u32 vcc, 9, v%d" % (20 + h))
    e("v_lshl_add_u32 v%d, v%d, 10, v28" % (20 + h, 20 + h))
    e("s_nop 0")
    e("v_cndmask_b32 v29, 0, v27, vcc")
    e("v_add_u32 v%d, v%d, v29" % (20 + h, 20 + h))
e("s_mov_b32 s36, 0x05040100")
e("s_mov_b32 s37, 0x07060302")
e("s_mov_b32 exec_hi, 0xffff")
e("s_waitcnt vmcnt(12)")
stamp("p")
for r in range(8):
    e("v_lshlrev_b32 v64, 16, v%d" % (32 + r))
    e("v_and_b32 v65, s38, v%d" % (32 + r))
    e("v_lshlrev_b32 v66, 16, v%d" % (40 + r))
    e("v_and_b32 v67, s38, v%d" % (40 + r))
    e("v_pk_add_f32 v[%d:%d], v[64:65], v[66:67]" % (72 + 2 * r, 73 + 2 * r))
for h in range(2):
    for i in range(4):
        e("v_cvt_pk_bf16_f32 v%d, v%d, v%d" % (88 + 4 * h + i, 72 + 4 * i + h, 72 + 4 * i + 2 + h))
e("ds_write_b128 v25, v[88:91]")
e("ds_write_b128 v25, v[92:95] offset:16")
e("ds_read_b128 v[88:91], v26")
e("ds_read_b128 v[92:95], v26 offset:768")
for h in range(2):
    for i in range(4):
        e("v_perm_b32 v%d, v%d, v%d, s%d" % (48 + 4 * h + i, 32 + 2 * i + 1, 32 + 2 * i, 36 + h))
e("s_waitcnt lgkmcnt(0)")
e("buffer_store_dwordx4 v[88:91], v20, s[16:19], s52 offen sc1")
e("buffer_store_dwordx4 v[92:95], v21, s[16:19], s52 offen sc1")
for h in range(2):
    for i in range(4):
        e("v_perm_b32 v%d, v%d, v%d, s%d" % (56 + 4 * h + i, 40 + 2 * i + 1, 40 + 2 * i, 36 + h))
e("ds_write_b128 v25, v[48:51] offset:1536")
e("ds_write_b128 v25, v[52:55] offset:1552")
e("ds_write_b128 v25, v[56:59] offset:3072")
e("ds_write_b128 v25, v[60:63] offset:3088")
for k in range(4):
    e("ds_read_b128 %s, v26 offset:%d" % (rng("v", 48 + 4 * k), 1536 + 768 * k))
e("s_mov_b64 exec, -1")
e("s_branch L_st_done")
lab("L_wo_st")
e("s_cmp_ge_u32 s48, 54")
e("s_cbranch_scc1 L_st_done")
e("s_waitcnt vmcnt(12)")
for i in range(4):
    e("v_lshl_or_b32 v%d, v%d, 16, v%d" % (32 + i, 36 + i, 32 + i))
e("s_cmp_ge_u32 s48, 36")
e("s_cbranch_scc1 L_wo8_st")
e("s_lshl_b32 s3, s48, 10")
e("s_add_u32 s3, s3, %d" % WS_WO)
e("buffer_store_dwordx4 v[32:35], v9, s[16:19], s3 offen sc1")
e("s_branch L_st_done")
lab("L_wo8_st")
e("v_lshlrev_b32 v25, 3, v0")
e("s_lshl_b32 s3, s50, 9")
e("s_add_u32 s3, s3, %d" % WS_WO8)
e("buffer_store_dwordx2 v[32:33], v25, s[16:19], s3 offen sc1")
lab("L_st_done")
stamp("p")
e("s_mov_b32 s36, 0x4000")
lab("L_ep")
e("buffer_load_dword v29, v30, s[44:47], 0 offen sc1")
e("s_waitcnt vmcnt(0)")
e("v_readfirstlane_b32 s62, v29")
e("s_cmp_lg_u32 s62, 0")
e("s_cbranch_scc1 L_epok")
e("s_sub_u32 s36, s36, 1")
e("s_cmp_lg_u32 s36, 0")
e("s_cbranch_scc1 L_ep")
lab("L_epok")
stamp("p")
e("s_waitcnt lgkmcnt(0)")
e("s_barrier")
e("s_lshl_b32 s4, s2, 2")
e("s_add_u32 s4, s4, %d" % WS_F1)
e("s_cmp_lg_u32 s28, 0")
e("s_cbranch_scc1 L_noflag1")
e("s_mov_b64 exec, 1")
e("buffer_store_dword v29, v30, s[16:19], s4 offen sc1")
e("s_mov_b64 exec, -1")
lab("L_noflag1")
e("s_cmp_ge_u32 s63, 864")
e("s_cbranch_scc1 L_noh")
e("s_mov_b32 exec_hi, 0xffff")
e("buffer_store_dwordx4 v[48:51], v20, s[16:19], s53 offen sc1")
e("buffer_store_dwordx4 v[52:55], v21, s[16:19], s53 offen sc1")
e("buffer_store_dwordx4 v[56:59], v20, s[16:19], s55 offen sc1")
e("buffer_store_dwordx4 v[60:63], v21, s[16:19], s55 offen sc1")
e("s_mov_b64 exec, -1")
lab("L_noh")
c("transform loads")
for i in range(12):
    e("v_add_u32 v24, 576, v%d" % (232 + i))
    e("v_subrev_u32 v25, 576, v%d" % (232 + i))
    e("buffer_load_dwordx4 %s, v24, s[12:15], 0 offen" % rng("v", 112 + 8 * i))
    e("buffer_load_dwordx4 %s, v25, s[12:15], 0 offen" % rng("v", 116 + 8 * i))
if not NOPF:
    c("prefetch the rest of the code into L2")
    e("s_getpc_b64 s[46:47]")
    lab("L_pc")
    e("v_lshlrev_b32 v20, 6, v19")
    e("v_add_u32 v22, 16384, v20")
    e("v_min_u32 v20, L_codeend-L_pc-4, v20")
    e("v_min_u32 v22, L_codeend-L_pc-4, v22")
    e("global_load_dword v31, v20, s[46:47]")
    e("global_load_dword v31, v22, s[46:47]")
NPF = 0 if NOPF else 2
c("misc setup")
e("s_lshl_b32 s3, s39, 1")
e("s_add_u32 s3, s3, s30")
e("s_mul_i32 s34, s3, %d" % (54 * 18432))
e("s_add_u32 s35, s34, 9216")
e("s_lshl_b32 s3, s29, 12")
e("v_add_u32 v1, s3, v9")
e("v_add_u32 v2, 8192, v9")
e("v_and_b32 v20, 15, v0")
e("v_lshrrev_b32 v21, 4, v0")
e("s_lshl_b32 s3, s30, 3")
e("s_sub_u32 s3, 14, s3")
e("v_add_u32 v3, s3, v20")
e("v_mul_u32_u24 v3, 288, v3")
e("v_lshlrev_b32 v4, 4, v21")
e("v_add_u32 v3, v3, v4")
e("s_mul_i32 s3, s29, 9216")
e("s_sub_u32 s37, %d, s3" % U0)
e("s_add_u32 s3, s3, %d" % U0)
e("v_add_u32 v10, s37, v3")
e("v_add_u32 v3, s3, v3")
e("v_add_u32 v13, 64, v3")
e("v_add_u32 v11, 64, v10")
e("v_add_u32 v4, 64, v4")
e("v_mov_b32 v7, -800")
e("v_mov_b32 v8, 288")
e("s_cmp_eq_u32 s30, 0")
e("s_mov_b32 s3, %d" % (D1 - U0 + 2304))
e("s_cselect_b32 s43, %d, s3" % (D0 - U0 + 2304))
e("s_mov_b32 s3, %d" % (ARR + 2304))
e("s_cselect_b32 s44, %d, s3" % (2304 - ARR))
e("v_lshlrev_b32 v12, 4, v19")
e("v_add_u32 v14, %d, v12" % U0)
e("v_add_u32 v15, %d, v12" % D0)
e("v_add_u32 v12, %d, v12" % D1)
for r in range(4): e("v_mov_b32 v%d, 0" % (16 + r))
e("s_nop 1")
for t in range(36):
    e("v_mfma_f32_16x16x32_bf16 %s, v[16:19], v[16:19], 0" % rng("a", 4 * t))
def t_iter(i, vm):
    B = 112 + 8 * i; C = B + 4; A = 208 + 4 * (i % 2)
    if i + 1 < 12: e("ds_read_b128 %s, v14 offset:%d" % (rng("v", 208 + 4 * ((i + 1) % 2)), 4096 * (i + 1)))
    e("s_waitcnt lgkmcnt(%d)" % (1 if i + 1 < 12 else 0) + ("" if vm is None else " vmcnt(%d)" % vm))
    for k in range(4):
        t = 216 + 6 * (k % 2)
        e("v_lshlrev_b32 v%d, 16, v%d" % (t, A + k)); e("v_and_b32 v%d, s38, v%d" % (t + 1, A + k))
        e("v_lshlrev_b32 v%d, 16, v%d" % (t + 2, B + k)); e("v_and_b32 v%d, s38, v%d" % (t + 3, B + k))
        e("v_lshlrev_b32 v%d, 16, v%d" % (t + 4, C + k)); e("v_and_b32 v%d, s38, v%d" % (t + 5, C + k))
        e("v_pk_add_f32 v[%d:%d], v[%d:%d], v[%d:%d] neg_lo:[0,1] neg_hi:[0,1]" % (t + 2, t + 3, t + 2, t + 3, t, t + 1))
        e("v_pk_add_f32 v[%d:%d], v[%d:%d], v[%d:%d] neg_lo:[0,1] neg_hi:[0,1]" % (t + 4, t + 5, t + 4, t + 5, t, t + 1))
        e("v_cvt_pk_bf16_f32 v%d, v%d, v%d" % (B + k, t + 2, t + 3))
        e("v_cvt_pk_bf16_f32 v%d, v%d, v%d" % (C + k, t + 4, t + 5))
    e("ds_write_b128 v12, %s offset:%d" % (rng("v", B), 4096 * i))
    e("ds_write_b128 v15, %s offset:%d" % (rng("v", C), 4096 * i))
e("ds_read_b128 v[208:211], v14")
for i in range(TSPLIT): t_iter(i, 22 - 2 * i + NPF)
stamp("p")
c("poll: all 252 production flags carry the tag (every wave polls)")
def poll_all(lbl, base, first_load=True):
    e("s_mov_b32 s5, 0x4000")
    e("s_mov_b32 s6, %d" % base)
    if not first_load: e("s_branch %s_chk" % lbl)
    lab(lbl)
    e("buffer_load_dwordx4 v[24:27], v9, s[16:19], s6 offen sc1")
    e("s_waitcnt vmcnt(0)")
    lab(lbl + "_chk")
    e("v_xor_b32 v24, s62, v24"); e("v_xor_b32 v25, s62, v25"); e("v_xor_b32 v26, s62, v26"); e("v_xor_b32 v27, s62, v27")
    e("v_or3_b32 v24, v24, v25, v26")
    e("v_or_b32 v24, v24, v27")
    e("v_cmp_ne_u32 vcc, 0, v24")
    e("s_nop 1")
    e("s_and_b32 vcc_hi, vcc_hi, 0x7fffffff")
    e("s_cmp_eq_u64 vcc, 0")
    e("s_cbranch_scc1 %s_ok" % lbl)
    e("s_sleep 4")
    e("s_sub_u32 s5, s5, 1")
    e("s_cmp_lg_u32 s5, 0")
    e("s_cbranch_scc1 %s" % lbl)
    lab(lbl + "_ok")
if "--poll1" in sys.argv:
    e("s_cmp_lg_u32 s28, 0")
    e("s_cbranch_scc1 L_poll1_ok")
poll_all("L_poll1", WS_F1)
if "--poll1" in sys.argv:
    e("s_waitcnt vmcnt(0)")
    e("s_barrier")
stamp("p")
for b in range(2):
    flat(wloads(b))
    e("s_add_u32 s34, s34, 18432")
    e("s_add_u32 s35, s35, 18432")
for i in range(TSPLIT, 12): t_iter(i, None)
e("s_waitcnt lgkmcnt(0)")
e("s_barrier")
stamp("a")
for bu in range(11): e(xread(bu))
e("s_cmp_lg_u32 s28, 0")
e("s_cbranch_scc1 L_noflag2")
e("s_add_u32 s4, s4, %d" % (WS_F2 - WS_F1))
e("s_mov_b64 exec, 1")
e("buffer_store_dword v29, v30, s[16:19], s4 offen sc1")
e("s_mov_b64 exec, -1")
lab("L_noflag2")
e("s_mov_b32 s36, 6")
e("s_mov_b32 s45, 0")
e("s_mov_b32 s7, 2")

def loop_end(label):
    e("s_sub_u32 s36, s36, 1")
    e("s_cmp_lg_u32 s36, 0")
    e("s_cbranch_scc1 %s" % label)

out.append(".p2align 6")
lab("L_pa")
s = Seg("pa")
for b in range(3):
    s.superstep(b, "A", vm=10, xswitch="s37" if b == 1 else None)
s.pour(["s_cmp_eq_u32 s36, 1", "s_cselect_b32 s37, s43, 0"], 44)
s.emit()
e("s_sub_u32 s36, s36, 1")
e("s_cmp_gt_u32 s36, s7")
e("s_cbranch_scc1 L_pa")
e("s_cmp_lg_u32 s45, 0")
e("s_cbranch_scc1 L_x")
e("s_cmp_eq_u32 s36, 0")
e("s_cbranch_scc1 L_copy")
e("s_cmp_eq_u32 s36, 1")
e("s_cbranch_scc1 L_chk2")
c("two iterations left in phase P: fetch the second-stage flags")
e("s_mov_b32 s6, %d" % WS_F2)
e("buffer_load_dwordx4 v[24:27], v9, s[16:19], s6 offen sc1")
e("s_branch L_pa")
lab("L_chk2")
poll_all("L_poll2", WS_F2, first_load=False)
e("s_branch L_pa")
lab("L_copy")
e("s_mov_b32 s7, 0")
c("copy P into the keep set")
e("s_barrier")
order = sorted(range(36), key=lambda t: s.touch[acc("A", t)][-1])
for t in order:
    for r in range(4):
        e("v_accvgpr_read_b32 v%d, a%d" % (112 + 4 * t + r, 4 * t + r))
e("s_mov_b32 s36, 6")
e("s_mov_b32 s45, 1")
e("s_mov_b32 s43, s44")
e("s_mul_i32 s46, s28, 12288")
e("s_add_u32 s46, s46, %d" % U0)
e("v_add_u32 v14, s46, v9")
e("s_xor_b32 s47, s28, 2")
e("s_mul_i32 s47, s47, 12288")
e("s_add_u32 s46, s47, %d" % U0)
e("s_add_u32 s47, s47, %d" % WS_WO)
e("v_add_u32 v15, s46, v9")
stamp()
e("s_branch L_pa")
lab("L_x")
stamp()
s = Seg("x")
for sg in range(36, 40):
    s.superstep(sg, "V", vm=10)
ss = lambda sg: s.ss0[sg]
col = lambda n: [ml * 8 + n for ml in range(4)]
rounds = [col(4) + col(6) + col(0), col(5) + col(7) + col(1), [34, 35] + col(3) + [32, 33] + col(2)]
def wr(r, i, reg):
    t = rounds[r][i]
    return [dict(ins="ds_write_b128 v%d, %s offset:%d" % (reg, rng("a", 4 * t), 1024 * i))]
s.pour([x for i in range(12) for x in wr(0, (i + 8) % 12, 14)], ss(36) + 4)
for r in range(1, 4):
    sg = 36 + r
    s.put(ss(sg), "s_waitcnt lgkmcnt(0)"); s.put(ss(sg), "s_barrier")
    reg = 15 if r % 2 == 1 else 14
    items = []
    def rd(gq):
        for i in range(2):
            items.append("ds_read_b128 %s, v%d offset:%d @x%d_%d" % (rng("v", 16 + 8 * (gq % 2) + 4 * i - (2 if False else 0)), reg, 1024 * (2 * gq + i), r, gq))
    rd(0); rd(1)
    items[-1] = dict(ins=items[-1], gap=5)
    for gq in range(6):
        items.append("@wait x%d_%d" % (r, gq))
        for i in range(2):
            t = rounds[r - 1][2 * gq + i]
            for k in range(4):
                items.append(dict(ins="v_add_f32 v%d, v%d, v%d" % (112 + 4 * t + k, 112 + 4 * t + k, 16 + 8 * (gq % 2) + 4 * i + k), wr=acc("V", t)))
        if gq + 2 < 6: rd(gq + 2)
        if r < 3:
            for i in range(2): items += wr(r, 2 * gq + i, reg)
    p = s.pour(items, ss(sg) + 1)
    assert p < ss(sg + 1) - (0 if r < 3 else 3), (r, p - ss(sg))
s.emit()
e("s_mov_b32 s36, 5")
e("s_waitcnt vmcnt(10)")
stamp()
e("s_branch L_pv1")
out.append(".p2align 6")
lab("L_pv")
s = Seg("pv")
s.superstep(0, "V", vm=10, wstart=12)
s.superstep(1, "V", vm=13)
s.superstep(2, "V", vm=10)
s.labels[72] = "L_pv1"
it = []
for i in range(3):
    it += [dict(ins="s_mov_b32 m0, s46", gap=1), "buffer_load_dwordx4 v9, s[16:19], s47 offen sc1 lds", "s_add_u32 s46, s46, 1024", dict(ins="s_add_u32 s47, s47, 1024", gap=1)]
p = s.pour(it, 1); assert p <= 12, p
s.pour(["s_cmp_eq_u32 s36, 1", "s_cselect_b32 s34, 0x7f000000, s34", "s_cselect_b32 s35, 0x7f000000, s35"], 48)
s.emit()
loop_end("L_pv")
stamp()

def act_tile(R, z):
    return [
        "v_pk_mul_f32 v[%d:%d], v[%d:%d], s[50:51]" % (R, R + 1, R, R + 1),
        "v_pk_mul_f32 v[%d:%d], v[%d:%d], s[52:53]" % (R + 2, R + 3, R + 2, R + 3),
        "v_exp_f32 v%d, v%d" % (R, R), "v_exp_f32 v%d, v%d" % (R + 1, R + 1),
        "v_exp_f32 v%d, v%d" % (R + 2, R + 2), "v_exp_f32 v%d, v%d" % (R + 3, R + 3),
        "v_pk_add_f32 v[%d:%d], v[%d:%d], s[54:55]" % (R, R + 1, R, R + 1),
        "v_rcp_f32 v%d, v%d" % (R, R),
        "v_pk_add_f32 v[%d:%d], v[%d:%d], s[54:55]" % (R + 2, R + 3, R + 2, R + 3),
        "v_rcp_f32 v%d, v%d" % (R + 1, R + 1),
        "v_rcp_f32 v%d, v%d" % (R + 2, R + 2), "v_rcp_f32 v%d, v%d" % (R + 3, R + 3),
        "v_pk_fma_f32 v[%d:%d], v[%d:%d], s[56:57], v[28:29]" % (R, R + 1, R, R + 1),
        "v_pk_mul_f32 v[%d:%d], v[%d:%d], v[%d:%d]" % (R, R + 1, R, R + 1, R + 2, R + 3),
        "v_cvt_pk_bf16_f32 v%d, v%d, v%d" % (z, R, R + 1),
    ]
for x in ["s_mov_b32 s50, 0x4038aa3b", "s_mov_b32 s51, 0x4038aa3b", "s_mov_b32 s52, 0xbfb8aa3b", "s_mov_b32 s53, 0xbfb8aa3b",
       "s_mov_b32 s54, 1.0", "s_mov_b32 s55, 1.0", "s_mov_b32 s56, -2.0", "s_mov_b32 s57, -2.0",
       "v_mov_b32 v28, 1.0", "v_mov_b32 v29, 1.0",
       "s_mul_i32 s47, s2, 18432", "s_add_u32 s47, s47, %d" % WS_Z,
       "s_lshl_b32 s3, s28, 12", "s_add_u32 s45, s47, s3", "s_lshl_b32 s43, s29, 11",
       "s_sub_u32 s44, s45, s43", "s_add_u32 s45, s45, s43",
       "s_lshl_b32 s3, s28, 9", "s_add_u32 s46, s47, s3", "s_add_u32 s46, s46, 16384",
       "v_lshlrev_b32 v12, 3, v0", "s_waitcnt vmcnt(0)"]: e(x)
c("activation: partner-destined tiles (local 0..3)")
for n in range(4):
    for ml in range(4):
        for x in act_tile(112 + 4 * (ml * 8 + n), 32 + 4 * n + ml): e(x)
    e("buffer_store_dwordx4 %s, v9, s[16:19], s%d offen offset:%d sc1" % (rng("v", 32 + 4 * n), 45 if n < 2 else 44, 1024 * n))
for k in range(2):
    for x in act_tile(112 + 4 * (32 + k), 64 + k): e(x)
e("buffer_store_dwordx2 v[64:65], v12, s[16:19], s46 offen sc1")
for x in ["s_lshl_b32 s3, s28, 11", "v_add_u32 v14, s3, v9", "s_xor_b32 s3, s3, 2048", "v_add_u32 v15, s3, v9"]: e(x)
c("sibling-destined tiles (local 6,7)")
for u in range(2):
    n = 6 + u
    for ml in range(4):
        for x in act_tile(112 + 4 * (ml * 8 + n), 32 + 4 * n + ml): e(x)
    e("ds_write_b128 v14, %s offset:%d" % (rng("v", 32 + 4 * n), 1024 * u))
for x in ["s_lshl_b32 s3, s30, 13", "s_add_u32 s48, s47, s3", "s_add_u32 s48, s48, 18432", "s_add_u32 s48, s48, s43",
       "s_add_u32 s49, s48, 4096", "s_add_u32 s58, s46, 18432",
       "s_lshl_b32 s59, s2, 7", "s_add_u32 s59, s59, %d" % WS_F3, "v_mov_b32 v26, 0", "v_mov_b32 v27, s62", "s_mov_b32 s63, s62",
       "s_lshl_b32 s3, s39, 1", "s_add_u32 s3, s3, s29", "s_lshl_b32 s3, s3, 10", "s_add_u32 s3, s3, %d" % U0,
       "v_add_u32 v16, s3, v9", "s_xor_b32 s3, s3, 1024", "v_add_u32 v17, s3, v9",
       "s_xor_b32 s3, s39, 1", "s_lshl_b32 s3, s3, 11", "s_add_u32 s3, s3, %d" % U0, "v_add_u32 v18, s3, v9",
       "s_mul_i32 s3, s39, 4608", "s_add_u32 s3, s3, %d" % (U0 + 36864), "v_add_u32 v19, s3, v12"]: e(x)
e("s_waitcnt vmcnt(0) lgkmcnt(0)")
e("s_barrier")
e("s_cmp_lg_u32 s28, 0")
e("s_cbranch_scc1 L_noflag")
e("s_mov_b64 exec, 1")
e("buffer_store_dword v27, v26, s[16:19], s59 offen sc1")
e("s_mov_b64 exec, -1")
lab("L_noflag")
e("s_cmp_eq_u32 s33, 125")
e("s_cbranch_scc1 L_end")
stamp()
for u in range(2):
    e("ds_read_b128 %s, v15 offset:%d" % (rng("v", 72 + 4 * u), 1024 * u))
wo = []
for k in range(4):
    for no in range(9):
        wo.append("ds_read_b128 %s, v%d offset:%d" % (rng("a", (no * 4 + k) * 4), 16 + min(k, 2), no * 4096 + (1024 if k == 3 else 0)))
for no in range(9):
    wo.append("ds_read_b64 %s, v19 offset:%d" % (rng("a", 232 + 2 * no, 2), no * 512))
c("own tiles (local 4,5)")
k = 0
for u in range(2):
    n = 4 + u
    for t, z in [(ml * 8 + n, 32 + 4 * n + ml) for ml in range(4)] + [(34 + u, 66 + 2 * u)]:
        for x in wo[k:k + 5]: e(x)
        k += 5
        for x in act_tile(112 + 4 * t, z): e(x)
e("s_mov_b32 s36, 0x4000")
e("buffer_load_dword v30, v26, s[16:19], s59 offen offset:128 sc1")
for x in ["v_and_b32 v20, 15, v0", "v_lshrrev_b32 v21, 4, v0",
       "v_lshrrev_b32 v22, 1, v20", "v_lshlrev_b32 v22, 2, v22", "v_and_b32 v23, 1, v20", "v_add_u32 v22, v22, v23",
       "s_mul_i32 s3, s32, 16000", "s_add_u32 s3, s3, s31", "s_add_u32 s3, s3, %d" % (128 + 2),
       "s_lshl_b32 s62, s29, 6", "s_add_u32 s3, s3, s62",
       "s_lshl_b32 s62, s30, 1", "s_sub_u32 s3, s3, s62",
       "v_add_u32 v22, s3, v22", "v_mul_u32_u24 v22, 288, v22",
       "v_lshl_add_u32 v24, v21, 4, v22", "v_lshl_add_u32 v25, v21, 3, v22", "s_movk_i32 s62, 9216"]: e(x)
e("s_waitcnt lgkmcnt(0)")
a2 = lambda u, no: 112 + (u * 9 + no) * 4
c("GEMM2 own half")
for k in range(2):
    for no in range(9):
        for u in range(2):
            z = (32 + 4 * (4 + u)) if k == 0 else 72 + 4 * u
            d = rng("v", a2(u, no))
            e("v_mfma_f32_16x16x32_bf16 %s, %s, %s, %s" % (d, rng("a", (no * 4 + k) * 4), rng("v", z), "0" if k == 0 else d))
c("poll partner flag")
lab("L_poll")
e("s_waitcnt vmcnt(0)")
e("v_readfirstlane_b32 s3, v30")
e("s_cmp_eq_u32 s3, s63")
e("s_cbranch_scc1 L_go")
e("buffer_load_dword v30, v26, s[16:19], s59 offen offset:128 sc1")
e("s_sub_u32 s36, s36, 1")
e("s_cmp_lg_u32 s36, 0")
e("s_cbranch_scc1 L_poll")
lab("L_go")
for u in range(2):
    e("buffer_load_dwordx4 %s, v9, s[16:19], s48 offen offset:%d sc1" % (rng("v", 80 + 8 * u), 1024 * u))
    e("buffer_load_dwordx4 %s, v9, s[16:19], s49 offen offset:%d sc1" % (rng("v", 84 + 8 * u), 1024 * u))
    e("buffer_load_dword v%d, v12, s[16:19], s58 offen offset:%d sc1" % (67 + 2 * u, 4 * u))
for u in range(2):
    e("s_waitcnt vmcnt(%d)" % (3 if u == 0 else 5))
    for k in range(2, 5):
        for no in range(9):
            d = rng("v", a2(u, no))
            if k < 4:
                e("v_mfma_f32_16x16x32_bf16 %s, %s, %s, %s" % (d, rng("a", (no * 4 + k) * 4), rng("v", 80 + 8 * u + 4 * (k - 2)), d))
            else:
                e("v_mfma_f32_16x16x16_bf16 %s, %s, %s, %s" % (d, rng("a", 232 + 2 * no, 2), rng("v", 66 + 2 * u, 2), d))
    so = "0" if u == 0 else "s62"
    for P in range(4):
        o = 184 + (u * 5 + P) * 4
        if P == 3: e("s_nop 3")
        for ee in range(2):
            d = a2(u, 2 * P + ee)
            e("v_cvt_pk_bf16_f32 v%d, v%d, v%d" % (o + 2 * ee, d, d + 1))
            e("v_cvt_pk_bf16_f32 v%d, v%d, v%d" % (o + 2 * ee + 1, d + 2, d + 3))
        e("buffer_store_dwordx4 %s, v24, s[24:27], %s offen offset:%d" % (rng("v", o), so, 64 * P))
    o = 184 + (u * 5 + 4) * 4
    d = a2(u, 8)
    e("v_cvt_pk_bf16_f32 v%d, v%d, v%d" % (o, d, d + 1))
    e("v_cvt_pk_bf16_f32 v%d, v%d, v%d" % (o + 1, d + 2, d + 3))
    e("buffer_store_dwordx2 %s, v25, s[24:27], %s offen offset:256" % (rng("v", o, 2), so))
if STAMPS:
    e("s_waitcnt vmcnt(0)")
    stamp("m")
    stamp_flush(nst[0])
    sys.stderr.write("stamps %d\n" % nst[0])
lab("L_end")
e("s_endpgm")
lab("L_codeend")
out.append('.section .rodata,"a"\n' + """.p2align 6
.amdhsa_kernel %s_kernel
  .amdhsa_next_free_vgpr 512
  .amdhsa_next_free_sgpr 102
  .amdhsa_accum_offset 256
  .amdhsa_group_segment_fixed_size 0
  .amdhsa_kernarg_size 48
  .amdhsa_user_sgpr_count 2
  .amdhsa_user_sgpr_kernarg_segment_ptr 1
  .amdhsa_system_sgpr_workgroup_id_x 1
.end_amdhsa_kernel""" % NAME)
lines = "\n".join(out).split("\n")
errs = hz.check(lines)
for x in errs[:40]: sys.stderr.write(x + "\n")
txt = "\n".join(lines) + "\n"
sys.stderr.write("%d hazards, %d bytes\n" % (len(errs), len(txt)))
args = [a for a in sys.argv[1:] if not a.startswith("--")]
open(args[0] if args else "cdna_kernels/%s.s" % NAME, "w").write(txt)
```

```python
import sys, re
WS_W = 0
WS_WO = 0x400000
WS_WO8 = WS_WO + 36864
WS_F1 = 0x420000
WS_F2 = 0x428000
WS_F1P = 0x429000
WS_F3 = 0x430000
WS_Z = 0x440000
WS_END = WS_Z + 252 * 18432
import hz

NAME = "standalone__autoregressive_conv_wavenet__speech"
STAMPS = "--stamps" in sys.argv
PST = "--pst" in sys.argv
NOREMAP = "--noremap" in sys.argv
NOPF = "--nopf" in sys.argv
GRID = 252 if NOREMAP else 256
HDR = """; Kernarg layout for this problem (48 bytes, ptrs only, base s[0:1]):
;   offset   0: d_in[0] x  shape=(2, 16000, 144) dtype=bfloat16 strides=(4608000, 288, 2) contiguous=True
;   offset   8: d_in[1] w  shape=(31, 144, 288) dtype=bfloat16 strides=(82944, 576, 2) contiguous=True
;   offset  16: d_in[2] w_o  shape=(144, 144) dtype=bfloat16 strides=(288, 2) contiguous=True
;   offset  24: d_out     shape=(2, 16000, 144) dtype=bfloat16 (2 bytes/elem)
;   offset  32: d_debug   256 bytes
;   offset  40: d_ws      268435456 bytes workspace
; @launch grid=(%d,1,1) block=(256,1,1) lds=163840
""" % GRID

out = []
def e(s): out.append(s)
def lab(s): out.append(s + ":")
def c(s): out.append("; " + s)

ARR = 49152
D1 = 12288
D0 = D1 + ARR
U0 = D0 + ARR
WS_ST = 0x1000000
nst = [0]
def stamp_ins():
    r = 64 + 4 * nst[0]
    nst[0] += 1
    return ["s_memtime s[%d:%d]" % (r, r + 1), "s_memrealtime s[%d:%d]" % (r + 2, r + 3), "s_waitcnt lgkmcnt(0)"]
def stamp(kind="m"):
    if not STAMPS: return
    HST = "--hst" in sys.argv
    if kind == "p" and not PST: return
    if kind == "m" and (PST or HST): return
    if kind == "h" and not HST: return
    for x in stamp_ins(): e(x)
def stamp_flush(n):
    e("s_lshl_b32 s3, s2, 2")
    e("s_add_u32 s3, s3, s28")
    e("s_mul_i32 s3, s3, %d" % (n * 16))
    e("s_add_u32 s3, s3, %d" % WS_ST)
    e("s_add_u32 s4, s60, s3")
    e("s_addc_u32 s5, s61, 0")
    e("v_mov_b32 v4, 0")
    for i in range(n):
        r = 64 + 4 * i
        for k in range(4):
            e("v_mov_b32 v%d, s%d" % (8 + k, r + k))
        e("global_store_dwordx4 v4, v[8:11], s[4:5] offset:%d" % (16 * i))
        e("s_nop 1")

def rng(k, r, n=4): return "%s[%d:%d]" % (k, r, r + n - 1)
def wbuf(b, ab, i):
    off = 20 * ab + 4 * i
    return ("v", 32 + off) if b == 0 else ("v", 72 + off) if b == 1 else ("a", 192 + off)
def gf(b): return 144 + 4 * b
def acc(s, t): return ("a", 4 * t) if s == "A" else ("v", 112 + 4 * t)
N8 = [0, 1, 4, 5]
def xread(b):
    pl, k = divmod(b, 3)
    return "ds_read_b128 %s, v%d offset:%d" % (rng("a", gf(b)), 3 if pl % 2 == 0 else 10, (2 * pl + k) * 4608)

def cost_of(ins):
    if ins.startswith("@") or ins.startswith("s_waitcnt") or ins.startswith("s_barrier"): return 0
    if ins.startswith("ds_write_b128"): return 5
    if ins.startswith("ds_write_b64"): return 3
    if ins.startswith("ds_write"): return 2
    if ins.startswith("buffer_store_dwordx4"): return 5
    if ins.startswith("buffer_store"): return 3
    if ins.split()[0] in hz.TRANS: return 2
    return 1
def is_valu(ins): return ins.startswith("v_")

def wloads(sg):
    b = sg % 3
    r = []
    for ab in range(2):
        for i in range(5):
            w = wbuf(b, ab, i)
            tag = " @W%d" % sg if (ab, i) == (1, 4) else ""
            if i < 4: r.append("buffer_load_dwordx4 %s, v1, s[16:19], s%d offen offset:%d sc1%s" % (rng(*w), 34 + ab, 1024 * i, tag))
            else: r.append("buffer_load_dwordx4 %s, v2, s[16:19], s%d offen sc1%s" % (rng(*w), 34 + ab, tag))
    return r

class Seg:
    CAP = 2
    def __init__(s, name, vtags=None):
        s.name = name; s.mf = []; s.fill = []; s.used = []; s.burst = {}; s.touch = {}; s.ss0 = {}; s.seq = 0
        s.vtags = dict(vtags or {}); s.labels = {}
    def slot(s, ins, a):
        s.touch.setdefault(a, []).append(len(s.mf))
        s.mf.append(ins); s.fill.append([]); s.used.append(0)
    def put(s, sl, ins, seq=-1):
        s.fill[sl].append((ins, seq)); s.used[sl] += cost_of(ins)
    def superstep(s, sg, aset, vm=None, xswitch=None, wstart=3, wgap=3):
        b = sg % 3
        base = len(s.mf); s.ss0[sg] = base
        for bu in range(12):
            pl, k = divmod(bu, 3)
            s.burst[(sg, bu)] = len(s.mf)
            x = rng("a", gf(bu))
            work = [(1, 2 * pl)] if k == 0 else [(0, 2 * pl), (1, 2 * pl + 1)] if k == 1 else [(0, 2 * pl + 1)]
            for ab, n in work:
                tl = [(ml, ml * 8 + n) for ml in range(4)]
                if n in N8: tl.append((4, 32 + N8.index(n)))
                for wi, t in tl:
                    a = acc(aset, t); w = wbuf(b, ab, wi)
                    s.slot("v_mfma_f32_16x16x32_bf16 %s, %s, %s, %s" % (rng(*a), rng(*w), x, rng(*a)), a)
        assert len(s.mf) - base == 72
        s.ss0[sg + 1] = len(s.mf)
        s.put(base, "@vwait W%d" % sg if vm is None else "s_waitcnt vmcnt(%d)" % vm)
        s.put(base, "s_waitcnt lgkmcnt(1)")
        s.put(base + 1, xread(11))
        s.put(s.burst[(sg, 6)], "s_waitcnt lgkmcnt(2)")
        s.put(base + 2, "v_mov_b32 v3, v13")
        s.put(base + 2, "v_mov_b32 v10, v11")
        for bu in range(11):
            s.put(s.burst[(sg, bu + 1)] + 1, xread(bu))
        it = ["v_add_u32 v4, 64, v4", dict(ins="v_cmp_le_u32 vcc, 0x120, v4", gap=3),
              "v_cndmask_b32 v5, 64, v7, vcc", "v_cndmask_b32 v6, 0, v8, vcc"]
        if xswitch: it.append("v_add_u32 v5, %s, v5" % xswitch)
        it += ["v_add_u32 v13, v3, v5", "v_add_u32 v11, v10, v5", "v_sub_u32 v4, v4, v6"]
        s.pour(it, base + 56)
        it = [dict(ins=x, gap=wgap) for x in wloads(sg + 2)] + ["s_add_u32 s34, s34, 18432", "s_add_u32 s35, s35, 18432"]
        return s.pour(it, base + wstart)
    def pour(s, items, start):
        s.seq += 1; seq = s.seq
        p = start
        for it in items:
            if isinstance(it, str): it = dict(ins=it)
            ins = it["ins"]; cost = cost_of(ins)
            p = max(p, it.get("rel", 0))
            while True:
                assert p < len(s.mf), "pour overflow: " + ins
                ok = s.used[p] + cost <= s.CAP or (s.used[p] == 0)
                if ok and not is_valu(ins) and any(is_valu(x) and q == seq for x, q in s.fill[p]): ok = False
                a = it.get("rd") or it.get("wr")
                if ok and a:
                    for t in s.touch.get(a, []):
                        if t < p <= t + 8: ok = False
                        if it.get("wr") and t - 2 < p <= t: ok = False
                if ok: break
                p += 1
            assert p <= it.get("dl", 1 << 30), "deadline miss: %s %d" % (ins, p)
            s.put(p, ins, seq)
            p += it.get("gap", 0)
        return p
    def emit(s):
        lin = []
        for i, (m, f) in enumerate(zip(s.mf, s.fill)):
            if i in s.labels: lin.append(s.labels[i] + ":")
            lin += [x for x, q in f if not is_valu(x)] + [x for x, q in f if is_valu(x)]
            lin.append(m)
        cnt = 0; tags = {}; vc = 0; vt = dict(s.vtags)
        for x in lin:
            if x.startswith("@wait "):
                e("s_waitcnt lgkmcnt(%d)" % min(cnt - tags[x[6:]], 15)); continue
            if x.startswith("@vwait "):
                n = vc - vt[x[7:]]; assert n <= 63
                e("s_waitcnt vmcnt(%d)" % n); continue
            tag = None
            if " @" in x: x, tag = x.split(" @")
            if x.startswith("ds_"): cnt += 1
            if x.startswith("buffer_"): vc += 1
            if tag:
                if x.startswith("ds_"): tags[tag] = cnt
                else: vt[tag] = vc
            e(x)
        over = sum(max(0, u - s.CAP) for u in s.used)
        sys.stderr.write("seg %s: %d mfma, overflow units %d\n" % (s.name, len(s.mf), over))

def t_advance():
    return ["v_add_u32 v173, 4, v173",
            dict(ins="v_cmp_le_u32 s[40:41], 36, v173", gap=2),
            "v_add_u32 v172, 8128, v172",
            "v_cndmask_b32 v175, 0, v176, s[40:41]",
            "v_cndmask_b32 v177, 0, 36, s[40:41]",
            "v_add_u32 v172, v172, v175",
            "v_sub_u32 v173, v173, v177"]
def t_loads(i):
    B = 112 + 8 * (i % 3)
    return ["v_add_u32 v178, 576, v172",
            "v_subrev_u32 v179, 576, v172",
            "buffer_load_dwordx4 %s, v178, s[12:15], 0 offen" % rng("v", B),
            "buffer_load_dwordx4 %s, v179, s[12:15], 0 offen" % rng("v", B + 4)]
def t_compute(i):
    B = 112 + 8 * (i % 3); C = B + 4; A = 136
    r = []
    for k in range(4):
        t = 140 + 6 * (k % 2)
        r += ["v_lshlrev_b32 v%d, 16, v%d" % (t, A + k), "v_and_b32 v%d, s38, v%d" % (t + 1, A + k),
              "v_lshlrev_b32 v%d, 16, v%d" % (t + 2, B + k), "v_and_b32 v%d, s38, v%d" % (t + 3, B + k),
              "v_lshlrev_b32 v%d, 16, v%d" % (t + 4, C + k), "v_and_b32 v%d, s38, v%d" % (t + 5, C + k),
              "v_sub_f32 v%d, v%d, v%d" % (t + 2, t + 2, t), "v_sub_f32 v%d, v%d, v%d" % (t + 3, t + 3, t + 1),
              "v_sub_f32 v%d, v%d, v%d" % (t + 4, t + 4, t), "v_sub_f32 v%d, v%d, v%d" % (t + 5, t + 5, t + 1),
              "v_cvt_pk_bf16_f32 v%d, v%d, v%d" % (164 + k, t + 2, t + 3),
              "v_cvt_pk_bf16_f32 v%d, v%d, v%d" % (168 + k, t + 4, t + 5)]
    return r
def flat(items):
    for it in items:
        if isinstance(it, dict):
            e(it["ins"].split(" @")[0])
            if it.get("gap"): e("s_nop 0")
        else: e(it.split(" @")[0])

def opt(name, default):
    return int(([a.split("=")[1] for a in sys.argv if a.startswith("--%s=" % name)] or [str(default)])[0])
EARLY = opt("early", 4)
out.append(HDR + '.amdgcn_target "amdgcn-amd-amdhsa--gfx950"\n.text')
out.append(".p2align 8\n.globl %s_kernel\n.type %s_kernel,@function" % (NAME, NAME))
lab(NAME + "_kernel")
e("s_cmp_ge_u32 s2, %d" % GRID)
e("s_cbranch_scc1 L_end")
if not NOREMAP:
    c("XCD-friendly remap: logical = (id&7)*32 + (id>>3) ; 252 real")
    e("s_mov_b32 s100, s2")
    e("s_and_b32 s3, s2, 7")
    e("s_lshl_b32 s3, s3, 5")
    e("s_lshr_b32 s2, s2, 3")
    e("s_add_u32 s2, s2, s3")
    e("s_cmp_ge_u32 s2, 252")
    e("s_cbranch_scc1 L_end")
stamp("a")
e("s_load_dwordx8 s[4:11], s[0:1], 0")
e("s_load_dwordx4 s[56:59], s[0:1], 32")
e("s_memrealtime s[54:55]")
e("v_lshrrev_b32 v1, 6, v0")
e("v_mov_b32 v19, v0")
e("v_and_b32 v0, 63, v0")
e("v_readfirstlane_b32 s28, v1")
e("v_lshlrev_b32 v9, 4, v0")
c("production unit: gw = 4*phys + wave ; unit = (ql*4 + kh*2 + AB)*3 + third")
e("s_lshl_b32 s63, s100, 2")
e("s_add_u32 s63, s63, s28")
e("s_mul_i32 s3, s63, 21846")
e("s_lshr_b32 s48, s3, 16")
e("s_mul_i32 s3, s48, 3")
e("s_sub_u32 s49, s63, s3")
e("s_lshr_b32 s51, s48, 2")
e("s_mul_i32 s3, s51, 3641")
e("s_lshr_b32 s50, s3, 16")
e("s_mul_i32 s3, s50, 18")
e("s_sub_u32 s51, s51, s3")
e("s_and_b32 s3, s48, 2")
e("s_lshl_b32 s3, s3, 1")
e("s_add_u32 s50, s50, s3")
e("s_and_b32 s3, s48, 1")
e("s_lshl_b32 s3, s3, 3")
e("s_add_u32 s50, s50, s3")
e("s_mul_i32 s52, s50, 165888")
e("s_mul_i32 s3, s51, 4608")
e("s_add_u32 s52, s52, s3")
e("s_add_u32 s53, s52, 82944")
e("s_mul_i32 s3, s49, 6")
e("v_lshrrev_b32 v20, 3, v0")
e("v_add_u32 v20, s3, v20")
e("v_and_b32 v21, 6, v0")
e("v_lshl_add_u32 v21, v20, 3, v21")
e("v_and_b32 v22, 1, v0")
e("v_mul_u32_u24 v22, 144, v22")
e("v_add_lshl_u32 v24, v21, v22, 1")
c("tile decode")
e("s_cmp_ge_u32 s2, 126")
e("s_cselect_b32 s32, 1, 0")
e("s_mul_i32 s3, s32, 126")
e("s_sub_u32 s33, s2, s3")
e("s_and_b32 s39, s33, 1")
e("s_lshl_b32 s31, s33, 7")
e("s_sub_u32 s31, s31, 128")
e("s_and_b32 s29, s28, 1")
e("s_lshr_b32 s30, s28, 1")
e("s_sub_u32 s3, s31, 60")
e("s_mul_i32 s3, s3, 288")
e("v_mul_u32_u24 v112, 1821, v19")
e("v_lshlrev_b32 v113, 4, v19")
e("v_add_u32 v113, s3, v113")
e("s_movk_i32 s42, 576")
e("v_lshrrev_b32 v114, 16, v112")
e("v_mad_u32_u24 v172, v114, s42, v113")
e("v_mul_u32_u24 v114, 36, v114")
e("v_sub_u32 v173, v19, v114")
e("v_lshlrev_b32 v174, 4, v19")
e("v_mov_b32 v176, 576")
e("s_lshl_b32 s40, s28, 10")
e("s_add_u32 s41, s40, %d" % D0)
e("s_add_u32 s40, s40, %d" % U0)
e("s_mul_i32 s3, s32, 4608000")
e("s_mov_b32 s22, 2571264")
e("s_mov_b32 s23, 0x20000")
e("s_mov_b32 s14, 4608000")
e("s_mov_b32 s15, 0x20000")
e("s_mov_b32 s46, 256")
e("s_mov_b32 s47, 0x20000")
e("v_mov_b32 v30, 0")
e("v_mov_b32 v216, 0")
e("v_mov_b32 v217, 0")
e("s_waitcnt lgkmcnt(0)")
stamp("p")
e("s_mov_b32 s20, s6")
e("s_and_b32 s21, s7, 0xffff")
e("s_add_u32 s12, s4, s3")
e("s_addc_u32 s13, s5, 0")
e("s_and_b32 s13, s13, 0xffff")
e("s_mov_b32 s44, s56")
e("s_and_b32 s45, s57, 0xffff")
e("s_cmp_lg_u32 s63, 0")
e("s_cbranch_scc1 L_noep")
c("the first wave publishes a launch-unique tag")
e("s_or_b32 s54, s54, 1")
e("v_mov_b32 v29, s54")
e("s_mov_b64 exec, 1")
e("buffer_store_dword v29, v30, s[44:47], 0 offen sc1")
e("s_mov_b64 exec, -1")
lab("L_noep")
e("s_cmp_ge_u32 s63, 864")
e("s_cbranch_scc1 L_wo_ld")
e("s_mov_b32 exec_hi, 0xffff")
for r in range(8):
    e("buffer_load_dword v%d, v24, s[20:23], s52 offen offset:%d" % (32 + r, r * 576))
for r in range(8):
    e("buffer_load_dword v%d, v24, s[20:23], s53 offen offset:%d" % (40 + r, r * 576))
e("s_mov_b64 exec, -1")
e("s_branch L_ld_done")
lab("L_wo_ld")
c("w_o units: W = gw-864 (<54)")
e("s_mov_b32 s20, s8")
e("s_and_b32 s21, s9, 0xffff")
e("s_mov_b32 s22, 41472")
e("s_sub_u32 s48, s63, 864")
e("s_lshr_b32 s49, s48, 2")
e("s_sub_u32 s50, s48, 36")
e("s_cmp_ge_i32 s50, 9")
e("s_cselect_b32 s51, 1, 0")
e("s_mul_i32 s3, s51, 9")
e("s_sub_u32 s52, s50, s3")
e("s_cmp_lt_u32 s48, 36")
e("s_cselect_b32 s49, s49, s52")
e("v_and_b32 v20, 15, v0")
e("v_lshrrev_b32 v21, 4, v0")
e("v_lshrrev_b32 v22, 2, v20")
e("v_lshlrev_b32 v22, 4, v22")
e("v_and_b32 v23, 3, v20")
e("v_lshl_add_u32 v22, v23, 1, v22")
e("s_lshr_b32 s3, s49, 1")
e("s_lshl_b32 s3, s3, 6")
e("s_and_b32 s52, s49, 1")
e("s_lshl_b32 s52, s52, 3")
e("s_add_u32 s3, s3, s52")
e("v_lshlrev_b32 v23, 1, v20")
e("s_cmp_eq_u32 s49, 8")
e("s_cselect_b64 vcc, -1, 0")
e("v_cndmask_b32 v22, v22, v23, vcc")
e("v_add_u32 v22, s3, v22")
e("v_mul_u32_u24 v23, 576, v21")
e("v_add_u32 v24, v22, v23")
e("s_and_b32 s3, s48, 3")
e("s_lshr_b32 s52, s3, 1")
e("s_mul_i32 s52, s52, %d" % (72 * 288))
e("s_and_b32 s3, s3, 1")
e("s_mul_i32 s3, s3, %d" % (32 * 288))
e("s_add_u32 s52, s52, s3")
e("s_mul_i32 s53, s51, %d" % (72 * 288))
e("s_add_u32 s53, s53, %d" % (64 * 288))
e("s_cmp_eq_u32 s51, 0")
e("s_mov_b32 s3, %d" % (-72 * 288))
e("s_cselect_b32 s54, %d, s3" % (72 * 288))
e("s_cmp_lt_u32 s48, 36")
e("s_cselect_b32 s52, s52, s53")
e("s_cselect_b32 s54, %d, s54" % (8 * 288))
for i in range(4):
    e("buffer_load_ushort v%d, v24, s[20:23], s52 offen" % (32 + i))
    e("buffer_load_ushort v%d, v24, s[20:23], s52 offen offset:288" % (36 + i))
    if i < 3:
        e("s_add_u32 s52, s52, s54")
        if i == 1:
            e("s_cmp_lt_u32 s48, 36")
            e("s_cselect_b32 s52, s52, 0")
            e("s_cselect_b32 s54, s54, 0")
lab("L_ld_done")
e("s_mov_b32 s16, s58")
e("s_and_b32 s17, s59, 0xffff")
e("s_mov_b32 s18, %d" % WS_END)
e("s_mov_b32 s19, 0x20000")
TLB = opt("tlb", 0)
if TLB:
    c("touch the workspace pages early (address translation warm-up)")
    e("v_lshlrev_b32 v28, 18, v0")
    e("v_add_u32 v28, 0x3ff80, v28")
    e("buffer_load_dword v31, v28, s[16:19], 0 offen sc1")
def dma_loop(n, lbl):
    for i in range(n):
        e("v_lshrrev_b32 v114, 16, v112")
        e("s_mov_b32 m0, s40")
        e("v_mad_u32_u24 v114, v114, s42, v113")
        e("v_add_u32 v112, %d, v112" % (256 * 1821))
        e("buffer_load_dwordx4 v114, s[12:15], 0 offen lds")
        e("v_add_u32 v113, 4096, v113")
        e("s_add_u32 s40, s40, 4096")
dma_loop(EARLY, "L_dma1")
stamp("p")
e("s_mov_b32 s60, s58"); e("s_mov_b32 s61, s59")
e("s_mov_b32 s38, 0xffff0000")
e("s_cmp_ge_u32 s63, 864")
e("s_cbranch_scc1 L_wo_st")
c("W production: dest addressing")
e("s_and_b32 s54, s50, 7")
e("s_lshr_b32 s55, s50, 3")
e("s_mul_i32 s3, s54, 18")
e("s_add_u32 s3, s3, s51")
e("s_lshr_b32 s52, s3, 2")
e("s_and_b32 s53, s3, 3")
e("s_lshr_b32 s54, s54, 2")
e("s_mul_i32 s3, s54, 36")
e("s_add_u32 s3, s3, s52")
e("s_mul_i32 s3, s3, 18432")
e("s_mul_i32 s55, s55, 9216")
e("s_add_u32 s3, s3, s55")
e("s_lshl_b32 s53, s53, 8")
e("s_add_u32 s52, s3, s53")
e("s_cmp_eq_u32 s54, 0")
e("s_cselect_b32 s53, 2, 1")
e("s_cselect_b32 s55, 1, 2")
e("s_mul_i32 s53, s53, %d" % (18 * 18432))
e("s_mul_i32 s55, s55, %d" % (18 * 18432))
e("s_add_u32 s53, s53, s52")
e("s_add_u32 s55, s55, s52")
c("LDS staging (per-wave scratch in the D1 area)")
e("s_mul_i32 s3, s28, 4608")
e("s_add_u32 s3, s3, %d" % D1)
e("v_lshlrev_b32 v25, 5, v0")
e("v_add_u32 v25, s3, v25")
e("v_add_u32 v26, s3, v9")
e("s_mul_i32 s3, s49, 6")
e("v_lshrrev_b32 v20, 4, v0")
e("v_add_u32 v20, s3, v20")
e("v_add_u32 v21, 3, v20")
e("v_mov_b32 v27, %d" % (1990656 - 9216))
e("v_and_b32 v28, 15, v0")
e("v_lshlrev_b32 v28, 4, v28")
for h in range(2):
    e("v_cmp_le_u32 vcc, 9, v%d" % (20 + h))
    e("v_lshl_add_u32 v%d, v%d, 10, v28" % (20 + h, 20 + h))
    e("s_nop 0")
    e("v_cndmask_b32 v29, 0, v27, vcc")
    e("v_add_u32 v%d, v%d, v29" % (20 + h, 20 + h))
e("s_mov_b32 s36, 0x05040100")
e("s_mov_b32 s37, 0x07060302")
e("s_mov_b32 exec_hi, 0xffff")
e("s_waitcnt vmcnt(%d)" % (EARLY + TLB))
stamp("p")
for r in range(8):
    e("v_lshlrev_b32 v64, 16, v%d" % (32 + r))
    e("v_and_b32 v65, s38, v%d" % (32 + r))
    e("v_lshlrev_b32 v66, 16, v%d" % (40 + r))
    e("v_and_b32 v67, s38, v%d" % (40 + r))
    e("v_pk_add_f32 v[%d:%d], v[64:65], v[66:67]" % (72 + 2 * r, 73 + 2 * r))
for h in range(2):
    for i in range(4):
        e("v_cvt_pk_bf16_f32 v%d, v%d, v%d" % (88 + 4 * h + i, 72 + 4 * i + h, 72 + 4 * i + 2 + h))
e("ds_write_b128 v25, v[88:91]")
e("ds_write_b128 v25, v[92:95] offset:16")
e("ds_read_b128 v[88:91], v26")
e("ds_read_b128 v[92:95], v26 offset:768")
for h in range(2):
    for i in range(4):
        e("v_perm_b32 v%d, v%d, v%d, s%d" % (48 + 4 * h + i, 32 + 2 * i + 1, 32 + 2 * i, 36 + h))
e("s_waitcnt lgkmcnt(0)")
e("buffer_store_dwordx4 v[88:91], v20, s[16:19], s52 offen sc1")
e("buffer_store_dwordx4 v[92:95], v21, s[16:19], s52 offen sc1")
for h in range(2):
    for i in range(4):
        e("v_perm_b32 v%d, v%d, v%d, s%d" % (56 + 4 * h + i, 40 + 2 * i + 1, 40 + 2 * i, 36 + h))
e("ds_write_b128 v25, v[48:51] offset:1536")
e("ds_write_b128 v25, v[52:55] offset:1552")
e("ds_write_b128 v25, v[56:59] offset:3072")
e("ds_write_b128 v25, v[60:63] offset:3088")
for k in range(4):
    e("ds_read_b128 %s, v26 offset:%d" % (rng("v", 200 + 4 * k), 1536 + 768 * k))
e("v_mov_b32 v216, v20")
e("v_mov_b32 v217, v21")
e("s_mov_b64 exec, -1")
e("s_branch L_st_done")
lab("L_wo_st")
e("s_cmp_ge_u32 s48, 54")
e("s_cbranch_scc1 L_st_done")
e("s_waitcnt vmcnt(%d)" % (EARLY + TLB))
for i in range(4):
    e("v_lshl_or_b32 v%d, v%d, 16, v%d" % (32 + i, 36 + i, 32 + i))
e("s_cmp_ge_u32 s48, 36")
e("s_cbranch_scc1 L_wo8_st")
e("s_lshl_b32 s3, s48, 10")
e("s_add_u32 s3, s3, %d" % WS_WO)
e("buffer_store_dwordx4 v[32:35], v9, s[16:19], s3 offen sc1")
e("s_branch L_st_done")
lab("L_wo8_st")
e("v_lshlrev_b32 v25, 3, v0")
e("s_lshl_b32 s3, s50, 9")
e("s_add_u32 s3, s3, %d" % WS_WO8)
e("buffer_store_dwordx2 v[32:33], v25, s[16:19], s3 offen sc1")
lab("L_st_done")
stamp("p")
MID = opt("mid", 12 - EARLY)
e("buffer_load_dword v29, v30, s[44:47], 0 offen sc1")
dma_loop(MID, "L_dma2")
e("s_mov_b32 s36, 0x4000")
e("s_waitcnt vmcnt(%d)" % MID)
e("s_branch L_epchk")
lab("L_ep")
e("buffer_load_dword v29, v30, s[44:47], 0 offen sc1")
e("s_waitcnt vmcnt(0)")
lab("L_epchk")
e("v_readfirstlane_b32 s62, v29")
e("s_cmp_lg_u32 s62, 0")
e("s_cbranch_scc1 L_epok")
e("s_sub_u32 s36, s36, 1")
e("s_cmp_lg_u32 s36, 0")
e("s_cbranch_scc1 L_ep")
lab("L_epok")
stamp("p")
e("s_waitcnt lgkmcnt(0)")
e("s_barrier")
e("s_lshl_b32 s4, s100, 7")
e("s_add_u32 s4, s4, %d" % WS_F1)
e("s_cmp_lg_u32 s28, 0")
e("s_cbranch_scc1 L_noflag1")
e("s_lshl_b32 s5, s2, 2")
e("s_add_u32 s5, s5, %d" % WS_F1P)
e("s_mov_b64 exec, 1")
e("buffer_store_dword v29, v30, s[16:19], s4 offen sc1")
e("buffer_store_dword v29, v30, s[16:19], s5 offen sc1")
e("s_mov_b64 exec, -1")
lab("L_noflag1")
dma_loop(12 - EARLY - MID, "L_dma3")
e("s_mov_b32 s6, %d" % WS_F1)
c("misc setup")
e("s_mov_b32 s24, s10")
e("s_and_b32 s25, s11, 0xffff")
e("s_mov_b32 s26, 9216000")
e("s_mov_b32 s27, 0x20000")
e("s_lshl_b32 s3, s39, 1")
e("s_add_u32 s3, s3, s30")
e("s_mul_i32 s34, s3, %d" % (54 * 18432))
e("s_add_u32 s35, s34, 9216")
e("s_lshl_b32 s3, s29, 12")
e("v_add_u32 v1, s3, v9")
e("v_add_u32 v2, 8192, v9")
e("v_and_b32 v20, 15, v0")
e("v_lshrrev_b32 v21, 4, v0")
e("s_lshl_b32 s3, s30, 3")
e("s_sub_u32 s3, 14, s3")
e("v_add_u32 v3, s3, v20")
e("v_mul_u32_u24 v3, 288, v3")
e("v_lshlrev_b32 v4, 4, v21")
e("v_add_u32 v3, v3, v4")
e("s_mul_i32 s3, s29, 9216")
e("s_sub_u32 s37, %d, s3" % U0)
e("s_add_u32 s3, s3, %d" % U0)
e("v_add_u32 v10, s37, v3")
e("v_add_u32 v3, s3, v3")
e("v_add_u32 v13, 64, v3")
e("v_add_u32 v11, 64, v10")
e("v_add_u32 v4, 64, v4")
e("v_mov_b32 v7, -800")
e("v_mov_b32 v8, 288")
e("s_cmp_eq_u32 s30, 0")
e("s_mov_b32 s3, %d" % (D1 - U0 + 2304))
e("s_cselect_b32 s43, %d, s3" % (D0 - U0 + 2304))
e("s_mov_b32 s3, %d" % (ARR + 2304))
e("s_cselect_b32 s44, %d, s3" % (2304 - ARR))
for r in range(4): e("v_mov_b32 v%d, 0" % (16 + r))
e("s_nop 1")
for t in range(36):
    e("v_mfma_f32_16x16x32_bf16 %s, v[16:19], v[16:19], 0" % rng("a", 4 * t))
stamp("p")
def chk_flags():
    e("v_xor_b32 v24, s62, v24"); e("v_xor_b32 v25, s62, v25"); e("v_xor_b32 v26, s62, v26"); e("v_xor_b32 v27, s62, v27")
    e("v_or3_b32 v24, v24, v25, v26")
    e("v_or_b32 v24, v24, v27")
    e("v_cmp_ne_u32 vcc, 0, v24")
    e("s_nop 1")
    e("s_and_b32 vcc_hi, vcc_hi, 0x7fffffff")
    e("s_cmp_eq_u64 vcc, 0")
def poll_all(lbl, base, first_load=True):
    e("s_mov_b32 s5, 0x4000")
    e("s_mov_b32 s6, %d" % base)
    if not first_load: e("s_branch %s_chk" % lbl)
    lab(lbl)
    e("buffer_load_dwordx4 v[24:27], v9, s[16:19], s6 offen sc1")
    e("s_waitcnt vmcnt(0)")
    lab(lbl + "_chk")
    chk_flags()
    e("s_cbranch_scc1 %s_ok" % lbl)
    e("s_sleep 2")
    e("s_sub_u32 s5, s5, 1")
    e("s_cmp_lg_u32 s5, 0")
    e("s_cbranch_scc1 %s" % lbl)
    lab(lbl + "_ok")
def w_first():
    for b in range(2):
        flat(wloads(b))
        e("s_add_u32 s34, s34, 18432")
        e("s_add_u32 s35, s35, 18432")
c("first stage: flags of the 96 earliest producers (24 per wave)")
e("s_mul_i32 s6, s28, %d" % (24 * 128))
e("s_add_u32 s6, s6, %d" % WS_F1)
e("v_min_u32 v25, 23, v0")
e("v_lshlrev_b32 v25, 7, v25")
e("s_mov_b32 s5, 0x4000")
lab("L_poll1")
e("buffer_load_dword v24, v25, s[16:19], s6 offen sc1")
e("s_waitcnt vmcnt(0)")
e("v_cmp_ne_u32 vcc, s62, v24")
e("s_nop 1")
e("s_cmp_eq_u64 vcc, 0")
e("s_cbranch_scc1 L_poll1_ok")
e("s_sleep %d" % opt("sleep", 2))
e("s_sub_u32 s5, s5, 1")
e("s_cmp_lg_u32 s5, 0")
e("s_cbranch_scc1 L_poll1")
lab("L_poll1_ok")
e("s_barrier")
stamp("p")
w_first()
for bu in range(11): e(xread(bu))
e("s_waitcnt vmcnt(10)")
c("prefetch the rest of the code into L2")
e("s_getpc_b64 s[46:47]")
lab("L_pc")
e("v_lshlrev_b32 v20, 2, v174")
e("v_add_u32 v22, 16384, v20")
e("v_min_u32 v20, L_codeend-L_pc-4, v20")
e("v_min_u32 v22, L_codeend-L_pc-4, v22")
if NOPF:
    e("v_mov_b32 v20, 0"); e("v_mov_b32 v22, 0")
e("global_load_dword v31, v20, s[46:47]")
e("global_load_dword v31, v22, s[46:47]")
e("s_mov_b32 s36, 5")
stamp("a")

def loop_end(label):
    e("s_sub_u32 s36, s36, 1")
    e("s_cmp_lg_u32 s36, 0")
    e("s_cbranch_scc1 %s" % label)

out.append(".p2align 6")
lab("L_pt")
s = Seg("pt")
for b in range(3):
    s.superstep(b, "A", vm=14)
for b in range(3):
    base = s.ss0[b]
    items = ["v_add_u32 v180, %d, v174" % (U0 - D1), dict(ins="ds_read_b128 v[136:139], v180 @ta%d" % b, gap=8), "@wait ta%d" % b] + t_compute(b)
    items += t_loads(b)
    items += ["ds_write_b64 v174, v[164:165]", "ds_write_b64 v174, v[166:167] offset:8",
              "ds_write_b64 v174, v[168:169] offset:%d" % ARR, "ds_write_b64 v174, v[170:171] offset:%d" % (ARR + 8),
              "v_add_u32 v174, 4096, v174"] + t_advance()
    gi = lambda x: x["ins"] if isinstance(x, dict) else x
    if "--x1" in sys.argv: items = [x for x in items if not gi(x).startswith("ds_write")]
    if "--x2" in sys.argv: items = [x if not gi(x).startswith("buffer_load") else gi(x).replace("v178", "v9").replace("v179", "v9") for x in items]
    if "--x3" in sys.argv: items = [x for x in items if x not in t_compute(b)]
    if "--x4" in sys.argv: items = [x for x in items if not gi(x).startswith("@wait")]
    p = s.pour(items, base + 3); assert p < base + 72, p - base
s.emit()
def hstores(k, lbl):
    e("s_cmp_ge_u32 s63, 864")
    e("s_cbranch_scc1 L_pt")
    e("s_mov_b32 exec_hi, 0xffff")
    if "--noh" not in sys.argv:
        e("buffer_store_dwordx4 v[%d:%d], v216, s[16:19], s%d offen sc1" % (200 + 8 * k, 203 + 8 * k, 53 + 2 * k))
        e("buffer_store_dwordx4 v[%d:%d], v217, s[16:19], s%d offen sc1" % (204 + 8 * k, 207 + 8 * k, 53 + 2 * k))
    e("s_mov_b64 exec, -1")
    e("s_branch L_pt")
def f1b_loads():
    e("buffer_load_dword v24, v20, s[16:19], s6 offen sc1")
    e("buffer_load_dword v25, v21, s[16:19], s6 offen sc1")
    e("buffer_load_dword v26, v22, s[16:19], s6 offen sc1")
e("s_sub_u32 s36, s36, 1")
e("s_cmp_eq_u32 s36, 3")
e("s_cbranch_scc1 L_h3")
e("s_cmp_eq_u32 s36, 2")
e("s_cbranch_scc1 L_h2")
e("s_cmp_eq_u32 s36, 1")
e("s_cbranch_scc1 L_h1")
e("s_cmp_eq_u32 s36, 0")
e("s_cbranch_scc1 L_ptdone")
stamp("h")
c("hook 4: fetch remaining first-stage flags (96..229), first H stores")
e("s_mov_b32 s6, %d" % WS_F1P)
e("buffer_load_dwordx4 v[24:27], v9, s[16:19], s6 offen sc1")
hstores(0, "a")
lab("L_h3")
stamp("h")
e("s_waitcnt vmcnt(24)")
poll_all("L_p1b", WS_F1P, first_load=False)
hstores(1, "b")
lab("L_h2")
stamp("h")
c("every wave has waited past its H stores: publish the second flag")
e("s_waitcnt vmcnt(24)")
e("s_barrier")
e("s_cmp_lg_u32 s28, 0")
e("s_cbranch_scc1 L_pt")
e("s_lshl_b32 s4, s2, 2")
e("s_add_u32 s4, s4, %d" % WS_F2)
e("s_mov_b64 exec, 1")
e("buffer_store_dword v29, v30, s[16:19], s4 offen sc1")
e("s_mov_b64 exec, -1")
e("s_branch L_pt")
lab("L_h1")
stamp("h")
e("s_mov_b32 s6, %d" % WS_F2)
e("buffer_load_dwordx4 v[24:27], v9, s[16:19], s6 offen sc1")
e("s_branch L_pt")
lab("L_ptdone")
stamp("h")
e("s_waitcnt vmcnt(24)")
poll_all("L_poll2", WS_F2, first_load=False)
e("s_waitcnt lgkmcnt(0)")
e("s_barrier")
stamp()
stamp("h")
e("s_mov_b32 s36, 1")
e("s_mov_b32 s45, 0")
out.append(".p2align 6")
lab("L_pa")
s = Seg("pa")
for b in range(3):
    s.superstep(b, "A", vm=10, xswitch="s37" if b == 1 else None)
s.pour(["s_cmp_eq_u32 s36, 1", "s_cselect_b32 s37, s43, 0"], 44)
s.emit()
loop_end("L_pa")
e("s_cmp_lg_u32 s45, 0")
e("s_cbranch_scc1 L_x")
c("copy P into the keep set")
e("s_barrier")
order = sorted(range(36), key=lambda t: s.touch[acc("A", t)][-1])
for t in order:
    for r in range(4):
        e("v_accvgpr_read_b32 v%d, a%d" % (112 + 4 * t + r, 4 * t + r))
e("s_mov_b32 s36, 6")
e("s_mov_b32 s45, 1")
e("s_mov_b32 s43, s44")
e("s_mul_i32 s46, s28, 12288")
e("s_add_u32 s46, s46, %d" % U0)
e("v_add_u32 v14, s46, v9")
e("s_xor_b32 s47, s28, 2")
e("s_mul_i32 s47, s47, 12288")
e("s_add_u32 s46, s47, %d" % U0)
e("s_add_u32 s47, s47, %d" % WS_WO)
e("v_add_u32 v15, s46, v9")
stamp()
e("s_branch L_pa")
lab("L_x")
stamp()
s = Seg("x")
for sg in range(36, 40):
    s.superstep(sg, "V", vm=10)
ss = lambda sg: s.ss0[sg]
col = lambda n: [ml * 8 + n for ml in range(4)]
rounds = [col(4) + col(6) + col(0), col(5) + col(7) + col(1), [34, 35] + col(3) + [32, 33] + col(2)]
def wr(r, i, reg):
    t = rounds[r][i]
    return [dict(ins="ds_write_b128 v%d, %s offset:%d" % (reg, rng("a", 4 * t), 1024 * i))]
s.pour([x for i in range(12) for x in wr(0, (i + 8) % 12, 14)], ss(36) + 4)
for r in range(1, 4):
    sg = 36 + r
    s.put(ss(sg), "s_waitcnt lgkmcnt(0)"); s.put(ss(sg), "s_barrier")
    reg = 15 if r % 2 == 1 else 14
    items = []
    def rd(gq):
        for i in range(2):
            items.append("ds_read_b128 %s, v%d offset:%d @x%d_%d" % (rng("v", 16 + 8 * (gq % 2) + 4 * i - (2 if False else 0)), reg, 1024 * (2 * gq + i), r, gq))
    rd(0); rd(1)
    items[-1] = dict(ins=items[-1], gap=5)
    for gq in range(6):
        items.append("@wait x%d_%d" % (r, gq))
        for i in range(2):
            t = rounds[r - 1][2 * gq + i]
            for k in range(4):
                items.append(dict(ins="v_add_f32 v%d, v%d, v%d" % (112 + 4 * t + k, 112 + 4 * t + k, 16 + 8 * (gq % 2) + 4 * i + k), wr=acc("V", t)))
        if gq + 2 < 6: rd(gq + 2)
        if r < 3:
            for i in range(2): items += wr(r, 2 * gq + i, reg)
    p = s.pour(items, ss(sg) + 1)
    assert p < ss(sg + 1) - (0 if r < 3 else 3), (r, p - ss(sg))
s.emit()
e("s_mov_b32 s36, 5")
e("s_waitcnt vmcnt(10)")
stamp()
e("s_branch L_pv1")
out.append(".p2align 6")
lab("L_pv")
s = Seg("pv")
s.superstep(0, "V", vm=10, wstart=12)
s.superstep(1, "V", vm=13)
s.superstep(2, "V", vm=10)
s.labels[72] = "L_pv1"
it = []
for i in range(3):
    it += [dict(ins="s_mov_b32 m0, s46", gap=1), "buffer_load_dwordx4 v9, s[16:19], s47 offen sc1 lds", "s_add_u32 s46, s46, 1024", dict(ins="s_add_u32 s47, s47, 1024", gap=1)]
p = s.pour(it, 1); assert p <= 12, p
s.pour(["s_cmp_eq_u32 s36, 1", "s_cselect_b32 s34, 0x7f000000, s34", "s_cselect_b32 s35, 0x7f000000, s35"], 48)
s.emit()
loop_end("L_pv")
stamp()

def act_tile(R, z):
    return [
        "v_pk_mul_f32 v[%d:%d], v[%d:%d], s[50:51]" % (R, R + 1, R, R + 1),
        "v_pk_mul_f32 v[%d:%d], v[%d:%d], s[52:53]" % (R + 2, R + 3, R + 2, R + 3),
        "v_exp_f32 v%d, v%d" % (R, R), "v_exp_f32 v%d, v%d" % (R + 1, R + 1),
        "v_exp_f32 v%d, v%d" % (R + 2, R + 2), "v_exp_f32 v%d, v%d" % (R + 3, R + 3),
        "v_pk_add_f32 v[%d:%d], v[%d:%d], s[54:55]" % (R, R + 1, R, R + 1),
        "v_rcp_f32 v%d, v%d" % (R, R),
        "v_pk_add_f32 v[%d:%d], v[%d:%d], s[54:55]" % (R + 2, R + 3, R + 2, R + 3),
        "v_rcp_f32 v%d, v%d" % (R + 1, R + 1),
        "v_rcp_f32 v%d, v%d" % (R + 2, R + 2), "v_rcp_f32 v%d, v%d" % (R + 3, R + 3),
        "v_pk_fma_f32 v[%d:%d], v[%d:%d], s[56:57], v[28:29]" % (R, R + 1, R, R + 1),
        "v_pk_mul_f32 v[%d:%d], v[%d:%d], v[%d:%d]" % (R, R + 1, R, R + 1, R + 2, R + 3),
        "v_cvt_pk_bf16_f32 v%d, v%d, v%d" % (z, R, R + 1),
    ]
for x in ["s_mov_b32 s50, 0x4038aa3b", "s_mov_b32 s51, 0x4038aa3b", "s_mov_b32 s52, 0xbfb8aa3b", "s_mov_b32 s53, 0xbfb8aa3b",
       "s_mov_b32 s54, 1.0", "s_mov_b32 s55, 1.0", "s_mov_b32 s56, -2.0", "s_mov_b32 s57, -2.0",
       "v_mov_b32 v28, 1.0", "v_mov_b32 v29, 1.0",
       "s_mul_i32 s47, s2, 18432", "s_add_u32 s47, s47, %d" % WS_Z,
       "s_lshl_b32 s3, s28, 12", "s_add_u32 s45, s47, s3", "s_lshl_b32 s43, s29, 11",
       "s_sub_u32 s44, s45, s43", "s_add_u32 s45, s45, s43",
       "s_lshl_b32 s3, s28, 9", "s_add_u32 s46, s47, s3", "s_add_u32 s46, s46, 16384",
       "v_lshlrev_b32 v12, 3, v0", "s_waitcnt vmcnt(0)"]: e(x)
c("activation: partner-destined tiles (local 0..3)")
for n in range(4):
    for ml in range(4):
        for x in act_tile(112 + 4 * (ml * 8 + n), 32 + 4 * n + ml): e(x)
    e("buffer_store_dwordx4 %s, v9, s[16:19], s%d offen offset:%d sc1" % (rng("v", 32 + 4 * n), 45 if n < 2 else 44, 1024 * n))
for k in range(2):
    for x in act_tile(112 + 4 * (32 + k), 64 + k): e(x)
e("buffer_store_dwordx2 v[64:65], v12, s[16:19], s46 offen sc1")
for x in ["s_lshl_b32 s3, s28, 11", "v_add_u32 v14, s3, v9", "s_xor_b32 s3, s3, 2048", "v_add_u32 v15, s3, v9"]: e(x)
c("sibling-destined tiles (local 6,7)")
for u in range(2):
    n = 6 + u
    for ml in range(4):
        for x in act_tile(112 + 4 * (ml * 8 + n), 32 + 4 * n + ml): e(x)
    e("ds_write_b128 v14, %s offset:%d" % (rng("v", 32 + 4 * n), 1024 * u))
for x in ["s_lshl_b32 s3, s30, 13", "s_add_u32 s48, s47, s3", "s_add_u32 s48, s48, 18432", "s_add_u32 s48, s48, s43",
       "s_add_u32 s49, s48, 4096", "s_add_u32 s58, s46, 18432",
       "s_lshl_b32 s59, s2, 7", "s_add_u32 s59, s59, %d" % WS_F3, "v_mov_b32 v26, 0", "v_mov_b32 v27, s62", "s_mov_b32 s63, s62",
       "s_lshl_b32 s3, s39, 1", "s_add_u32 s3, s3, s29", "s_lshl_b32 s3, s3, 10", "s_add_u32 s3, s3, %d" % U0,
       "v_add_u32 v16, s3, v9", "s_xor_b32 s3, s3, 1024", "v_add_u32 v17, s3, v9",
       "s_xor_b32 s3, s39, 1", "s_lshl_b32 s3, s3, 11", "s_add_u32 s3, s3, %d" % U0, "v_add_u32 v18, s3, v9",
       "s_mul_i32 s3, s39, 4608", "s_add_u32 s3, s3, %d" % (U0 + 36864), "v_add_u32 v19, s3, v12"]: e(x)
e("s_waitcnt vmcnt(0) lgkmcnt(0)")
e("s_barrier")
e("s_cmp_lg_u32 s28, 0")
e("s_cbranch_scc1 L_noflag")
e("s_mov_b64 exec, 1")
e("buffer_store_dword v27, v26, s[16:19], s59 offen sc1")
e("s_mov_b64 exec, -1")
lab("L_noflag")
e("s_cmp_eq_u32 s33, 125")
e("s_cbranch_scc1 L_end")
stamp()
for u in range(2):
    e("ds_read_b128 %s, v15 offset:%d" % (rng("v", 72 + 4 * u), 1024 * u))
wo = []
for k in range(4):
    for no in range(9):
        wo.append("ds_read_b128 %s, v%d offset:%d" % (rng("a", (no * 4 + k) * 4), 16 + min(k, 2), no * 4096 + (1024 if k == 3 else 0)))
for no in range(9):
    wo.append("ds_read_b64 %s, v19 offset:%d" % (rng("a", 232 + 2 * no, 2), no * 512))
c("own tiles (local 4,5)")
k = 0
for u in range(2):
    n = 4 + u
    for t, z in [(ml * 8 + n, 32 + 4 * n + ml) for ml in range(4)] + [(34 + u, 66 + 2 * u)]:
        for x in wo[k:k + 5]: e(x)
        k += 5
        for x in act_tile(112 + 4 * t, z): e(x)
e("s_mov_b32 s36, 0x4000")
e("buffer_load_dword v30, v26, s[16:19], s59 offen offset:128 sc1")
for x in ["v_and_b32 v20, 15, v0", "v_lshrrev_b32 v21, 4, v0",
       "v_lshrrev_b32 v22, 1, v20", "v_lshlrev_b32 v22, 2, v22", "v_and_b32 v23, 1, v20", "v_add_u32 v22, v22, v23",
       "s_mul_i32 s3, s32, 16000", "s_add_u32 s3, s3, s31", "s_add_u32 s3, s3, %d" % (128 + 2),
       "s_lshl_b32 s62, s29, 6", "s_add_u32 s3, s3, s62",
       "s_lshl_b32 s62, s30, 1", "s_sub_u32 s3, s3, s62",
       "v_add_u32 v22, s3, v22", "v_mul_u32_u24 v22, 288, v22",
       "v_lshl_add_u32 v24, v21, 4, v22", "v_lshl_add_u32 v25, v21, 3, v22", "s_movk_i32 s62, 9216"]: e(x)
e("s_waitcnt lgkmcnt(0)")
a2 = lambda u, no: 112 + (u * 9 + no) * 4
c("GEMM2 own half")
for k in range(2):
    for no in range(9):
        for u in range(2):
            z = (32 + 4 * (4 + u)) if k == 0 else 72 + 4 * u
            d = rng("v", a2(u, no))
            e("v_mfma_f32_16x16x32_bf16 %s, %s, %s, %s" % (d, rng("a", (no * 4 + k) * 4), rng("v", z), "0" if k == 0 else d))
c("poll partner flag")
lab("L_poll")
e("s_waitcnt vmcnt(0)")
e("v_readfirstlane_b32 s3, v30")
e("s_cmp_eq_u32 s3, s63")
e("s_cbranch_scc1 L_go")
e("buffer_load_dword v30, v26, s[16:19], s59 offen offset:128 sc1")
e("s_sub_u32 s36, s36, 1")
e("s_cmp_lg_u32 s36, 0")
e("s_cbranch_scc1 L_poll")
lab("L_go")
for u in range(2):
    e("buffer_load_dwordx4 %s, v9, s[16:19], s48 offen offset:%d sc1" % (rng("v", 80 + 8 * u), 1024 * u))
    e("buffer_load_dwordx4 %s, v9, s[16:19], s49 offen offset:%d sc1" % (rng("v", 84 + 8 * u), 1024 * u))
    e("buffer_load_dword v%d, v12, s[16:19], s58 offen offset:%d sc1" % (67 + 2 * u, 4 * u))
for u in range(2):
    e("s_waitcnt vmcnt(%d)" % (3 if u == 0 else 5))
    for k in range(2, 5):
        for no in range(9):
            d = rng("v", a2(u, no))
            if k < 4:
                e("v_mfma_f32_16x16x32_bf16 %s, %s, %s, %s" % (d, rng("a", (no * 4 + k) * 4), rng("v", 80 + 8 * u + 4 * (k - 2)), d))
            else:
                e("v_mfma_f32_16x16x16_bf16 %s, %s, %s, %s" % (d, rng("a", 232 + 2 * no, 2), rng("v", 66 + 2 * u, 2), d))
    so = "0" if u == 0 else "s62"
    for P in range(4):
        o = 184 + (u * 5 + P) * 4
        if P == 3: e("s_nop 3")
        for ee in range(2):
            d = a2(u, 2 * P + ee)
            e("v_cvt_pk_bf16_f32 v%d, v%d, v%d" % (o + 2 * ee, d, d + 1))
            e("v_cvt_pk_bf16_f32 v%d, v%d, v%d" % (o + 2 * ee + 1, d + 2, d + 3))
        e("buffer_store_dwordx4 %s, v24, s[24:27], %s offen offset:%d" % (rng("v", o), so, 64 * P))
    o = 184 + (u * 5 + 4) * 4
    d = a2(u, 8)
    e("v_cvt_pk_bf16_f32 v%d, v%d, v%d" % (o, d, d + 1))
    e("v_cvt_pk_bf16_f32 v%d, v%d, v%d" % (o + 1, d + 2, d + 3))
    e("buffer_store_dwordx2 %s, v25, s[24:27], %s offen offset:256" % (rng("v", o, 2), so))
if STAMPS:
    e("s_waitcnt vmcnt(0)")
    stamp("m")
    stamp_flush(nst[0])
    sys.stderr.write("stamps %d\n" % nst[0])
lab("L_end")
e("s_endpgm")
lab("L_codeend")
out.append('.section .rodata,"a"\n' + """.p2align 6
.amdhsa_kernel %s_kernel
  .amdhsa_next_free_vgpr 512
  .amdhsa_next_free_sgpr 102
  .amdhsa_accum_offset 256
  .amdhsa_group_segment_fixed_size 0
  .amdhsa_kernarg_size 48
  .amdhsa_user_sgpr_count 2
  .amdhsa_user_sgpr_kernarg_segment_ptr 1
  .amdhsa_system_sgpr_workgroup_id_x 1
.end_amdhsa_kernel""" % NAME)
lines = "\n".join(out).split("\n")
errs = hz.check(lines)
for x in errs[:40]: sys.stderr.write(x + "\n")
txt = "\n".join(lines) + "\n"
sys.stderr.write("%d hazards, %d bytes\n" % (len(errs), len(txt)))
args = [a for a in sys.argv[1:] if not a.startswith("--")]
open(args[0] if args else "cdna_kernels/%s.s" % NAME, "w").write(txt)
```

```python
import sys, re
import hz

NAME = "standalone__autoregressive_conv_wavenet__speech"
def flag(n): return ("--" + n) in sys.argv
def opt(name, default):
    return int(([a.split("=")[1] for a in sys.argv if a.startswith("--%s=" % name)] or [str(default)])[0])
STAMPS = flag("stamps"); PST = flag("pst")
WS_WO = 0x400000; WS_WO8 = WS_WO + 36864
WS_F1 = 0x420000; WS_F2 = 0x428000; WS_F1P = 0x429000; WS_F3 = 0x430000
WS_Z = 0x440000; WS_END = WS_Z + 252 * 18432
WS_ST = 0x1000000
ARR = 49152; D1 = 12288; D0 = D1 + ARR; U0 = D0 + ARR
BIG = 0x7f000000
HDR = """; Kernarg layout for this problem (48 bytes, ptrs only, base s[0:1]):
; @launch grid=(256,1,1) block=(256,1,1) lds=163840
"""
out = []
def e(s): out.extend(s.split("\n"))
def E(*l):
    for s in l: e(s)
def lab(s): out.append(s + ":")
def c(s): out.append("; " + s)

nst = [0]
def stamp_ins():
    r = 64 + 4 * nst[0]; nst[0] += 1
    return "s_memtime s[%d:%d]\ns_memrealtime s[%d:%d]\ns_waitcnt lgkmcnt(0)" % (r, r + 1, r + 2, r + 3)
def stamp_on(kind): return STAMPS and (kind == "a" or (kind == "p") == PST)
def stamp(kind="m"):
    if stamp_on(kind) and nst[0] < 9: e(stamp_ins())
def stamp_flush(n):
    E("s_lshl_b32 s3, s2, 2", "s_add_u32 s3, s3, s28", "s_mul_i32 s3, s3, %d" % (n * 16), "s_add_u32 s3, s3, %d" % WS_ST,
      "s_add_u32 s4, s60, s3", "s_addc_u32 s5, s61, 0", "v_mov_b32 v4, 0")
    for i in range(n):
        for k in range(4): e("v_mov_b32 v%d, s%d" % (8 + k, 64 + 4 * i + k))
        e("global_store_dwordx4 v4, v[8:11], s[4:5] offset:%d" % (16 * i)); e("s_nop 1")

def rng(k, r, n=4): return "%s[%d:%d]" % (k, r, r + n - 1)
def wbuf(b, ab, i):
    off = 20 * ab + 4 * i
    return ("v", 32 + off) if b == 0 else ("v", 72 + off) if b == 1 else ("a", 192 + off)
def gf(b): return 144 + 4 * b
N8 = [0, 1, 4, 5]
col = lambda n: [ml * 8 + n for ml in range(4)]
ROUNDS = [col(4) + col(6) + col(0), col(5) + col(7) + col(1), [34, 35] + col(3) + [32, 33] + col(2)]
APOS = {t: i for i, t in enumerate(sum(ROUNDS, []))}
def acc(s, t): return ("a", 4 * APOS[t]) if s == "A" else ("v", 112 + 4 * t)
def xread(b):
    pl, k = divmod(b, 3)
    return "ds_read_b128 %s, v%d offset:%d" % (rng("a", gf(b)), 3 if pl % 2 == 0 else 10, (2 * pl + k) * 4608)
SNAKE = not flag("nosnake")
def bursts():
    r = []
    for pl in range(4):
        e_, o_ = 2 * pl, 2 * pl + 1
        if not SNAKE: r += [(3 * pl, [(1, e_, 0)]), (3 * pl + 1, [(0, e_, 0), (1, o_, 0)]), (3 * pl + 2, [(0, o_, 0)])]
        elif pl % 2 == 0: r += [(3 * pl, [(1, e_, 0)]), (3 * pl + 1, [(1, o_, 1), (0, e_, 0)]), (3 * pl + 2, [(0, o_, 1)])]
        else: r += [(3 * pl + 2, [(0, o_, 0)]), (3 * pl + 1, [(0, e_, 1), (1, o_, 0)]), (3 * pl, [(1, e_, 1)])]
    return r
BUR = bursts()
FORD = [b for b, _ in BUR]

def cost_of(ins):
    if "\n" in ins: return sum(cost_of(x) for x in ins.split("\n"))
    if ins.startswith("@") or ins.startswith("s_waitcnt") or ins.startswith("s_barrier") or ins.endswith(":"): return 0
    if ins.startswith("ds_write_b128") or ins.startswith("buffer_store_dwordx4"): return 5
    if ins.startswith("ds_write_b64"): return 3
    if ins.startswith("ds_write") or ins.startswith("buffer_store"): return 2
    if ins.split()[0] in hz.TRANS: return 2
    return 1
def is_valu(ins): return ins.startswith("v_")

def wloads(sg, sregs=(34, 35)):
    b = sg % 3; r = []
    for ab in (1, 0):
        for i in range(5):
            w = wbuf(b, ab, i)
            tag = " @W%d" % sg if (ab, i) == (0, 4) else ""
            if i < 4: r.append("buffer_load_dwordx4 %s, v1, s[16:19], s%d offen offset:%d sc1%s" % (rng(*w), sregs[ab], 1024 * i, tag))
            else: r.append("buffer_load_dwordx4 %s, v2, s[16:19], s%d offen sc1%s" % (rng(*w), sregs[ab], tag))
    return r

class Seg:
    CAP = 2
    def __init__(s, name, vtags=None):
        s.name = name; s.mf = []; s.fill = []; s.used = []; s.burst = {}; s.touch = {}; s.ss0 = {}; s.seq = 0
        s.vtags = dict(vtags or {})
    def slot(s, ins, a):
        s.touch.setdefault(a, []).append(len(s.mf))
        s.mf.append(ins); s.fill.append([]); s.used.append(0)
    def put(s, sl, ins, seq=-1):
        s.fill[sl].append((ins, seq)); s.used[sl] += cost_of(ins)
    def superstep(s, sg, aset, vm=None, xswitch=None, wload=True, xnext=True, wstart=3, wgap=3):
        b = sg % 3
        base = len(s.mf); s.ss0[sg] = base
        for bi, (fr, work) in enumerate(BUR):
            s.burst[(sg, bi)] = len(s.mf)
            x = rng("a", gf(fr))
            for ab, n, desc in work:
                tl = [(ml, ml * 8 + n) for ml in range(4)]
                if n in N8: tl.append((4, 32 + N8.index(n)))
                if desc: tl.reverse()
                for wi, t in tl:
                    a = acc(aset, t); w = wbuf(b, ab, wi)
                    s.slot("v_mfma_f32_16x16x32_bf16 %s, %s, %s, %s" % (rng(*a), rng(*w), x, rng(*a)), a)
        assert len(s.mf) - base == 72
        s.ss0[sg + 1] = len(s.mf)
        s.put(base, "@vwait W%d" % sg if vm is None else "s_waitcnt vmcnt(%d)" % vm)
        s.put(base, "s_waitcnt lgkmcnt(1)")
        s.put(base + 1, xread(FORD[11]))
        s.put(s.burst[(sg, 6)], "s_waitcnt lgkmcnt(%d)" % (2 if xnext else 0))
        if xnext:
            s.put(base + 2, "v_mov_b32 v3, v13"); s.put(base + 2, "v_mov_b32 v10, v11")
            for bi in range(11): s.put(s.burst[(sg, bi + 1)] + 1, xread(FORD[bi]))
            it = ["v_add_u32 v4, 64, v4", dict(ins="v_cmp_le_u32 vcc, 0x120, v4", gap=3),
                  "v_cndmask_b32 v5, 64, v7, vcc", "v_cndmask_b32 v6, 0, v8, vcc"]
            if xswitch: it.append("v_add_u32 v5, %s, v5" % xswitch)
            it += ["v_add_u32 v13, v3, v5", "v_add_u32 v11, v10, v5", "v_sub_u32 v4, v4, v6"]
            s.pour(it, base + 56)
        if wload:
            it = [dict(ins=x, gap=wgap) for x in wloads(sg + 2)] + ["s_add_u32 s34, s34, 18432", "s_add_u32 s35, s35, 18432"]
            s.pour(it, base + wstart)
    def pour(s, items, start):
        s.seq += 1; seq = s.seq; p = start
        for it in items:
            if isinstance(it, str): it = dict(ins=it)
            ins = it["ins"]; cost = cost_of(ins)
            p = max(p, it.get("rel", 0))
            while True:
                assert p < len(s.mf), "pour overflow: " + ins
                ok = s.used[p] + cost <= s.CAP or (s.used[p] == 0)
                if ok and not is_valu(ins) and any(is_valu(x) and q == seq for x, q in s.fill[p]): ok = False
                a = it.get("rd") or it.get("wr")
                if ok and a:
                    for t in s.touch.get(a, []):
                        if t < p <= t + 8: ok = False
                        if it.get("wr") and t - 2 < p <= t: ok = False
                if ok: break
                p += 1
            assert p <= it.get("dl", 1 << 30), "deadline miss: %s %d" % (ins, p)
            s.put(p, ins, seq)
            p += it.get("gap", 0)
        return p
    def emit(s):
        lin = []
        for m, f in zip(s.mf, s.fill):
            lin += [x for x, q in f if not is_valu(x)] + [x for x, q in f if is_valu(x)]
            lin.append(m)
        cnt = 0; tags = {}; vc = 0; vt = dict(s.vtags)
        for x in lin:
            if x.startswith("@wait "):
                e("s_waitcnt lgkmcnt(%d)" % min(cnt - tags[x[6:]], 15)); continue
            if x.startswith("@vwait "):
                n = vc - vt[x[7:]]; assert 0 <= n <= 63
                e("s_waitcnt vmcnt(%d)" % n); continue
            if x == "@stamp":
                stamp("m"); continue
            tag = None
            if " @" in x: x, tag = x.split(" @")
            if x.startswith("ds_"): cnt += 1
            if x.startswith("buffer_"): vc += 1
            if tag:
                if x.startswith("ds_"): tags[tag] = cnt
                else: vt[tag] = vc
            e(x)
        over = sum(max(0, u - s.CAP) for u in s.used)
        sys.stderr.write("seg %s: %d mfma, overflow units %d\n" % (s.name, len(s.mf), over))
        return {k: v - vc for k, v in vt.items()}
def flat(items):
    for it in items:
        if isinstance(it, dict):
            e(it["ins"].split(" @")[0])
            if it.get("gap"): e("s_nop 0")
        else: e(it.split(" @")[0])

EARLY = opt("early", 0); MID = opt("mid", 0)
out.append(HDR + '.amdgcn_target "amdgcn-amd-amdhsa--gfx950"\n.text')
out.append(".macro M d, a, b\nv_mfma_f32_16x16x32_bf16 \\d, \\a, \\b, \\d\n.endm")
out.append(".globl %s_kernel\n.p2align 8\n.type %s_kernel,@function" % (NAME, NAME))
lab(NAME + "_kernel")
E("s_cmp_ge_u32 s2, 256", "s_cbranch_scc1 L_end")
c("XCD-friendly remap: logical = (id&7)*32 + (id>>3); 252 logical workgroups")
E("s_mov_b32 s100, s2", "s_and_b32 s3, s2, 7", "s_lshl_b32 s3, s3, 5", "s_lshr_b32 s2, s2, 3", "s_add_u32 s2, s2, s3",
  "s_cmp_ge_u32 s2, 252", "s_cbranch_scc1 L_end")
stamp("a")
E("s_load_dwordx8 s[4:11], s[0:1], 0", "s_load_dwordx4 s[56:59], s[0:1], 32", "s_memrealtime s[54:55]",
  "v_lshrrev_b32 v1, 6, v0", "v_mov_b32 v19, v0", "v_and_b32 v0, 63, v0", "v_readfirstlane_b32 s28, v1", "v_lshlrev_b32 v9, 4, v0")
c("weight-production unit: gw = 4*phys + wave = ((ql*4 + kh*2 + AB)*3 + third)")
E("s_lshl_b32 s63, s100, 2", "s_add_u32 s63, s63, s28", "s_mul_i32 s3, s63, 21846", "s_lshr_b32 s48, s3, 16",
  "s_mul_i32 s3, s48, 3", "s_sub_u32 s49, s63, s3", "s_lshr_b32 s51, s48, 2", "s_mul_i32 s3, s51, 3641", "s_lshr_b32 s50, s3, 16",
  "s_mul_i32 s3, s50, 18", "s_sub_u32 s51, s51, s3", "s_and_b32 s3, s48, 2", "s_lshl_b32 s3, s3, 1", "s_add_u32 s50, s50, s3",
  "s_and_b32 s3, s48, 1", "s_lshl_b32 s3, s3, 3", "s_add_u32 s50, s50, s3",
  "s_mul_i32 s52, s50, 165888", "s_mul_i32 s3, s51, 4608", "s_add_u32 s52, s52, s3", "s_add_u32 s53, s52, 82944",
  "s_mul_i32 s3, s49, 6", "v_lshrrev_b32 v20, 3, v0", "v_add_u32 v20, s3, v20", "v_and_b32 v21, 6, v0",
  "v_lshl_add_u32 v21, v20, 3, v21", "v_and_b32 v22, 1, v0", "v_mul_u32_u24 v22, 144, v22", "v_add_lshl_u32 v24, v21, v22, 1")
c("tile decode")
E("s_cmp_ge_u32 s2, 126", "s_cselect_b32 s32, 1, 0", "s_mul_i32 s3, s32, 126", "s_sub_u32 s33, s2, s3", "s_and_b32 s39, s33, 1",
  "s_lshl_b32 s31, s33, 7", "s_sub_u32 s31, s31, 128", "s_and_b32 s29, s28, 1", "s_lshr_b32 s30, s28, 1",
  "s_sub_u32 s3, s31, 60", "s_mul_i32 s3, s3, 288",
  "v_mul_u32_u24 v112, 1821, v19", "v_lshlrev_b32 v113, 4, v19", "v_add_u32 v113, s3, v113", "s_movk_i32 s42, 576",
  "s_lshl_b32 s40, s28, 10", "s_add_u32 s41, s40, %d" % D0, "s_add_u32 s40, s40, %d" % U0,
  "s_mul_i32 s3, s32, 4608000", "s_mov_b32 s22, 2571264", "s_mov_b32 s23, 0x20000", "s_mov_b32 s14, 4608000", "s_mov_b32 s15, 0x20000",
  "s_mov_b32 s46, 256", "s_mov_b32 s47, 0x20000", "s_mov_b32 s18, %d" % WS_END, "s_mov_b32 s19, 0x20000",
  "v_mov_b32 v30, 0", "v_mov_b32 v216, %d" % BIG, "v_mov_b32 v217, %d" % BIG, "s_waitcnt lgkmcnt(0)")
stamp("p")
E("s_mov_b32 s20, s6", "s_and_b32 s21, s7, 0xffff", "s_add_u32 s12, s4, s3", "s_addc_u32 s13, s5, 0", "s_and_b32 s13, s13, 0xffff",
  "s_mov_b32 s44, s56", "s_and_b32 s45, s57, 0xffff", "s_cmp_lg_u32 s63, 0", "s_cbranch_scc1 L_noep")
c("the first wave publishes a launch-unique tag")
E("s_or_b32 s54, s54, 1", "v_mov_b32 v29, s54", "s_mov_b64 exec, 1", "buffer_store_dword v29, v30, s[44:47], 0 offen sc1", "s_mov_b64 exec, -1")
lab("L_noep")
E("s_cmp_ge_u32 s63, 864", "s_cbranch_scc1 L_wo_ld", "s_mov_b32 exec_hi, 0xffff")
for r in range(8): e("buffer_load_dword v%d, v24, s[20:23], s52 offen offset:%d" % (32 + r, r * 576))
for r in range(8): e("buffer_load_dword v%d, v24, s[20:23], s53 offen offset:%d" % (40 + r, r * 576))
E("s_mov_b64 exec, -1", "s_branch L_ld_done")
lab("L_wo_ld")
c("w_o units: W = gw-864 (<54)")
E("s_mov_b32 s20, s8", "s_and_b32 s21, s9, 0xffff", "s_mov_b32 s22, 41472", "s_sub_u32 s48, s63, 864", "s_lshr_b32 s49, s48, 2",
  "s_sub_u32 s50, s48, 36", "s_cmp_ge_i32 s50, 9", "s_cselect_b32 s51, 1, 0", "s_mul_i32 s3, s51, 9", "s_sub_u32 s52, s50, s3",
  "s_cmp_lt_u32 s48, 36", "s_cselect_b32 s49, s49, s52",
  "v_and_b32 v20, 15, v0", "v_lshrrev_b32 v21, 4, v0", "v_lshrrev_b32 v22, 2, v20", "v_lshlrev_b32 v22, 4, v22", "v_and_b32 v23, 3, v20",
  "v_lshl_add_u32 v22, v23, 1, v22", "s_lshr_b32 s3, s49, 1", "s_lshl_b32 s3, s3, 6", "s_and_b32 s52, s49, 1", "s_lshl_b32 s52, s52, 3",
  "s_add_u32 s3, s3, s52", "v_lshlrev_b32 v23, 1, v20", "s_cmp_eq_u32 s49, 8", "s_cselect_b64 vcc, -1, 0",
  "v_cndmask_b32 v22, v22, v23, vcc", "v_add_u32 v22, s3, v22", "v_mul_u32_u24 v23, 576, v21", "v_add_u32 v24, v22, v23",
  "s_and_b32 s3, s48, 3", "s_lshr_b32 s52, s3, 1", "s_mul_i32 s52, s52, %d" % (72 * 288), "s_and_b32 s3, s3, 1",
  "s_mul_i32 s3, s3, %d" % (32 * 288), "s_add_u32 s52, s52, s3", "s_mul_i32 s53, s51, %d" % (72 * 288), "s_add_u32 s53, s53, %d" % (64 * 288),
  "s_cmp_eq_u32 s51, 0", "s_mov_b32 s3, %d" % (-72 * 288), "s_cselect_b32 s54, %d, s3" % (72 * 288),
  "s_cmp_lt_u32 s48, 36", "s_cselect_b32 s52, s52, s53", "s_cselect_b32 s54, %d, s54" % (8 * 288))
for i in range(4):
    e("buffer_load_ushort v%d, v24, s[20:23], s52 offen" % (32 + i))
    e("buffer_load_ushort v%d, v24, s[20:23], s52 offen offset:288" % (36 + i))
    if i < 3:
        e("s_add_u32 s52, s52, s54")
        if i == 1: E("s_cmp_lt_u32 s48, 36", "s_cselect_b32 s52, s52, 0", "s_cselect_b32 s54, s54, 0")
E("s_mov_b32 s53, 0", "s_mov_b32 s55, 0")
lab("L_ld_done")
ndma = [0]
def dma_u0(n):
    for i in range(n):
        k = ndma[0]; ndma[0] += 1
        E("v_lshrrev_b32 v114, 16, v112", "s_mov_b32 m0, s40", "v_mad_u32_u24 v%d, v114, s42, v113" % (232 + k),
          "v_add_u32 v112, %d, v112" % (256 * 1821), "buffer_load_dwordx4 v%d, s[12:15], 0 offen lds" % (232 + k),
          "v_add_u32 v113, 4096, v113", "s_add_u32 s40, s40, 4096")
XPF = opt("xpf", 1)
NXP = 0
if XPF:
    c("pull the lines of this workgroup's own 128 rows that hold u0 data towards L2 (40 lanes per wave)")
    NXP = 1
    E("s_add_u32 s101, s31, 128", "s_mul_i32 s101, s101, 288", "s_mul_i32 s3, s28, 9216", "s_add_u32 s101, s101, s3",
      "v_min_u32 v116, 39, v0", "v_mul_u32_u24 v117, 13108, v116", "v_lshrrev_b32 v117, 16, v117",
      "v_mul_u32_u24 v118, %d, v117" % (1152 - 640), "v_lshl_add_u32 v117, v116, 7, v118",
      "buffer_load_dword v31, v117, s[12:15], s101 offen")
dma_u0(EARLY)
stamp("p")
E("s_mov_b32 s60, s58", "s_mov_b32 s61, s59", "s_mov_b32 s16, s58", "s_and_b32 s17, s59, 0xffff", "s_mov_b32 s38, 0xffff0000",
  "s_cmp_ge_u32 s63, 864", "s_cbranch_scc1 L_wo_st")
c("W production: destination addressing")
E("s_and_b32 s54, s50, 7", "s_lshr_b32 s55, s50, 3", "s_mul_i32 s3, s54, 18", "s_add_u32 s3, s3, s51", "s_lshr_b32 s52, s3, 2",
  "s_and_b32 s53, s3, 3", "s_lshr_b32 s54, s54, 2", "s_mul_i32 s3, s54, 36", "s_add_u32 s3, s3, s52", "s_mul_i32 s3, s3, 18432",
  "s_mul_i32 s55, s55, 9216", "s_add_u32 s3, s3, s55", "s_lshl_b32 s53, s53, 8", "s_add_u32 s52, s3, s53",
  "s_cmp_eq_u32 s54, 0", "s_cselect_b32 s53, 2, 1", "s_cselect_b32 s55, 1, 2",
  "s_mul_i32 s53, s53, %d" % (18 * 18432), "s_mul_i32 s55, s55, %d" % (18 * 18432), "s_add_u32 s53, s53, s52", "s_add_u32 s55, s55, s52",
  "s_mul_i32 s3, s28, 4608", "s_add_u32 s3, s3, %d" % D1, "v_lshlrev_b32 v25, 5, v0", "v_add_u32 v25, s3, v25", "v_add_u32 v26, s3, v9",
  "s_mul_i32 s3, s49, 6", "v_lshrrev_b32 v20, 4, v0", "v_add_u32 v20, s3, v20", "v_add_u32 v21, 3, v20",
  "v_mov_b32 v27, %d" % (1990656 - 9216), "v_and_b32 v28, 15, v0", "v_lshlrev_b32 v28, 4, v28", "s_mov_b32 exec_hi, 0xffff")
for h in range(2):
    E("v_cmp_le_u32 vcc, 9, v%d" % (20 + h), "v_lshl_add_u32 v%d, v%d, 10, v28" % (20 + h, 20 + h), "s_nop 0",
      "v_cndmask_b32 v29, 0, v27, vcc", "v_add_u32 v%d, v%d, v29" % (216 + h, 20 + h))
E("s_mov_b32 s36, 0x05040100", "s_mov_b32 s37, 0x07060302", "s_waitcnt vmcnt(%d)" % (EARLY + NXP))
stamp("p")
for r in range(8):
    E("v_lshlrev_b32 v64, 16, v%d" % (32 + r), "v_and_b32 v65, s38, v%d" % (32 + r), "v_lshlrev_b32 v66, 16, v%d" % (40 + r),
      "v_and_b32 v67, s38, v%d" % (40 + r), "v_pk_add_f32 v[%d:%d], v[64:65], v[66:67]" % (72 + 2 * r, 73 + 2 * r))
for h in range(2):
    for i in range(4): e("v_cvt_pk_bf16_f32 v%d, v%d, v%d" % (88 + 4 * h + i, 72 + 4 * i + h, 72 + 4 * i + 2 + h))
E("ds_write_b128 v25, v[88:91]", "ds_write_b128 v25, v[92:95] offset:16", "ds_read_b128 v[88:91], v26", "ds_read_b128 v[92:95], v26 offset:768")
for h in range(2):
    for i in range(4): e("v_perm_b32 v%d, v%d, v%d, s%d" % (48 + 4 * h + i, 32 + 2 * i + 1, 32 + 2 * i, 36 + h))
E("s_waitcnt lgkmcnt(0)", "buffer_store_dwordx4 v[88:91], v216, s[16:19], s52 offen sc1", "buffer_store_dwordx4 v[92:95], v217, s[16:19], s52 offen sc1")
for h in range(2):
    for i in range(4): e("v_perm_b32 v%d, v%d, v%d, s%d" % (56 + 4 * h + i, 40 + 2 * i + 1, 40 + 2 * i, 36 + h))
E("ds_write_b128 v25, v[48:51] offset:1536", "ds_write_b128 v25, v[52:55] offset:1552",
  "ds_write_b128 v25, v[56:59] offset:3072", "ds_write_b128 v25, v[60:63] offset:3088")
for k in range(4): e("ds_read_b128 %s, v26 offset:%d" % (rng("v", 200 + 4 * k), 1536 + 768 * k))
E("s_mov_b64 exec, -1", "s_branch L_st_done")
lab("L_wo_st")
E("s_cmp_ge_u32 s48, 54", "s_cbranch_scc1 L_st_done", "s_waitcnt vmcnt(%d)" % (EARLY + NXP))
for i in range(4): e("v_lshl_or_b32 v%d, v%d, 16, v%d" % (32 + i, 36 + i, 32 + i))
E("s_cmp_ge_u32 s48, 36", "s_cbranch_scc1 L_wo8_st", "s_lshl_b32 s3, s48, 10", "s_add_u32 s3, s3, %d" % WS_WO,
  "buffer_store_dwordx4 v[32:35], v9, s[16:19], s3 offen sc1", "s_branch L_st_done")
lab("L_wo8_st")
E("v_lshlrev_b32 v25, 3, v0", "s_lshl_b32 s3, s50, 9", "s_add_u32 s3, s3, %d" % WS_WO8, "buffer_store_dwordx2 v[32:33], v25, s[16:19], s3 offen sc1")
lab("L_st_done")
stamp("p")
e("buffer_load_dword v29, v30, s[44:47], 0 offen sc1")
dma_u0(MID)
E("s_mov_b32 s36, 0x4000", "v_cmp_eq_u32 vcc, 0, v19", "v_mov_b32 v28, %d" % BIG, "s_lshl_b32 s4, s100, 7", "s_add_u32 s4, s4, %d" % WS_F1,
  "v_cndmask_b32 v28, v28, 0, vcc", "s_lshl_b32 s5, s2, 2", "s_add_u32 s5, s5, %d" % WS_F1P,
  "s_waitcnt vmcnt(%d)" % MID, "s_branch L_epchk")
lab("L_ep")
E("buffer_load_dword v29, v30, s[44:47], 0 offen sc1", "s_waitcnt vmcnt(0)")
lab("L_epchk")
E("v_readfirstlane_b32 s62, v29", "s_cmp_lg_u32 s62, 0", "s_cbranch_scc1 L_epok", "s_sub_u32 s36, s36, 1", "s_cmp_lg_u32 s36, 0", "s_cbranch_scc1 L_ep")
lab("L_epok")
stamp("p")
c("publish (only thread 0 has an in-range offset in v28)")
E("s_waitcnt lgkmcnt(0)", "s_barrier", "buffer_store_dword v29, v28, s[16:19], s4 offen sc1", "buffer_store_dword v29, v28, s[16:19], s5 offen sc1")
dma_u0(12 - EARLY - MID)
if XPF:
    c("... and the remaining lines (32 lanes per wave)")
    E("v_and_b32 v116, 31, v0", "v_lshrrev_b32 v118, 2, v116", "v_mul_u32_u24 v118, %d, v118" % (1152 - 512), "v_lshl_add_u32 v118, v116, 7, v118",
      "buffer_load_dword v31, v118, s[12:15], s101 offen offset:640")
c("prefetch the code into L2")
e("s_getpc_b64 s[46:47]")
lab("L_pc")
c("each workgroup of an XCD touches a 2 KiB slice (8 lines of 64 B per wave)")
E("s_lshr_b32 s3, s100, 3", "s_lshl_b32 s3, s3, 2", "s_add_u32 s3, s3, s28", "s_lshl_b32 s3, s3, 9",
  "v_and_b32 v20, 7, v0", "v_lshlrev_b32 v20, 6, v20", "v_add_u32 v20, s3, v20", "v_min_u32 v22, L_codeend-L_pc-4, v20",
  "global_load_dword v31, v22, s[46:47]")
c("misc setup")
E("s_mov_b32 s24, s10", "s_and_b32 s25, s11, 0xffff", "s_mov_b32 s26, 9216000", "s_mov_b32 s27, 0x20000",
  "s_lshl_b32 s3, s39, 1", "s_add_u32 s3, s3, s30", "s_mul_i32 s34, s3, %d" % (54 * 18432), "s_add_u32 s35, s34, 9216",
  "s_lshl_b32 s3, s29, 12", "v_add_u32 v1, s3, v9", "v_add_u32 v2, 8192, v9", "v_and_b32 v20, 15, v0", "v_lshrrev_b32 v21, 4, v0",
  "s_lshl_b32 s3, s30, 3", "s_sub_u32 s3, 14, s3", "v_add_u32 v3, s3, v20", "v_mul_u32_u24 v3, 288, v3", "v_lshlrev_b32 v4, 4, v21",
  "v_add_u32 v3, v3, v4", "s_mul_i32 s3, s29, 9216", "s_sub_u32 s37, %d, s3" % U0, "s_add_u32 s3, s3, %d" % U0,
  "v_add_u32 v10, s37, v3", "v_add_u32 v3, s3, v3", "v_add_u32 v13, 64, v3", "v_add_u32 v11, 64, v10", "v_add_u32 v4, 64, v4",
  "v_mov_b32 v7, -800", "v_mov_b32 v8, 288",
  "s_cmp_eq_u32 s30, 0", "s_mov_b32 s3, %d" % (D1 - U0 + 2304), "s_cselect_b32 s43, %d, s3" % (D0 - U0 + 2304),
  "s_mov_b32 s3, %d" % (ARR + 2304), "s_cselect_b32 s44, %d, s3" % (2304 - ARR))
c("transform: strip addressing (seg, col): v12 LDS d1 (+ARR: d0), v14 LDS u0, v15 global u1m")
E("v_min_u32 v20, 251, v19", "v_mul_u32_u24 v21, 1821, v20", "v_lshrrev_b32 v21, 16, v21", "v_mul_u32_u24 v22, %d, v21" % (6912 - 576),
  "v_lshl_add_u32 v22, v20, 4, v22", "v_add_u32 v12, %d, v22" % D1, "v_add_u32 v14, %d, v22" % U0,
  "v_mul_u32_u24 v21, 6912, v21", "s_sub_u32 s3, s31, 62", "s_mul_i32 s3, s3, 288", "v_add3_u32 v15, v22, v21, s3",
  "s_lshl_b32 s7, s2, 2", "s_add_u32 s7, s7, %d" % WS_F2, "s_mov_b32 s45, %d" % WS_F1P, "s_mov_b32 s46, %d" % WS_F2,
  "s_add_u32 s36, s34, 18432", "s_add_u32 s37, s35, 18432", "s_add_u32 s48, s36, 18432", "s_add_u32 s49, s37, 18432")
stamp("p")
c("first stage: flags of the 96 earliest producers (24 per wave)")
E("s_mul_i32 s6, s28, %d" % (24 * 128), "s_add_u32 s6, s6, %d" % WS_F1, "v_min_u32 v25, 23, v0", "v_lshlrev_b32 v25, 7, v25", "s_mov_b32 s5, 0x4000")
lab("L_poll1")
E("buffer_load_dword v24, v25, s[16:19], s6 offen sc1", "s_waitcnt vmcnt(0)", "v_cmp_ne_u32 vcc, s62, v24", "s_nop 1", "s_cmp_eq_u64 vcc, 0",
  "s_cbranch_scc1 L_poll1_ok", "s_sleep 2", "s_sub_u32 s5, s5, 1", "s_cmp_lg_u32 s5, 0", "s_cbranch_scc1 L_poll1")
lab("L_poll1_ok")
e("s_barrier")
stamp("p")
flat(wloads(0))
for bi in range(11): e(xread(FORD[bi]))
if STAMPS: e("s_waitcnt vmcnt(0)")
stamp("a")

slow = []
def flag_check(name, sreg):
    it = ["v_xor_b32 v24, s62, v24", "v_xor_b32 v25, s62, v25", "v_xor_b32 v26, s62, v26", "v_xor_b32 v27, s62, v27",
          "v_or3_b32 v24, v24, v25, v26", "v_or_b32 v24, v24, v27", dict(ins="v_cmp_ne_u32 s[4:5], 0, v24", gap=2),
          "s_and_b32 s5, s5, 0x7fffffff", "s_cmp_lg_u64 s[4:5], 0\ns_cbranch_scc1 %s\n%s_ret:" % (name, name)]
    slow.extend([name + ":", "s_mov_b32 s6, 0x4000", name + "_l:", "buffer_load_dwordx4 v[24:27], v9, s[16:19], s%d offen sc1" % sreg, "s_waitcnt vmcnt(0)"]
                + [x if isinstance(x, str) else x["ins"] + "\ns_nop 1" for x in it[:-1]]
                + ["s_cmp_eq_u64 s[4:5], 0", "s_cbranch_scc1 %s_ret" % name, "s_sleep 2", "s_sub_u32 s6, s6, 1", "s_cmp_lg_u32 s6, 0",
                   "s_cbranch_scc1 %s_l" % name, "s_branch %s_ret" % name])
    return it

s = Seg("A", vtags={"W0": 0})
for sg in range(21):
    s.superstep(sg, "A", wload=(sg != 0), xswitch="s43" if sg == 16 else None)
ss = lambda sg: s.ss0[sg]
seen = set()
for i in range(72):
    d = s.mf[i].split()[1].rstrip(",")
    if d not in seen:
        seen.add(d); s.mf[i] = s.mf[i][:s.mf[i].rindex(",")] + ", 0"
it = [dict(ins=x, gap=2) for x in wloads(1, (36, 37))] + [dict(ins=x, gap=3) for x in wloads(2, (48, 49))]
it += ["s_add_u32 s34, s34, %d" % (3 * 18432), "s_add_u32 s35, s35, %d" % (3 * 18432)]
p = s.pour(it, 1); assert p < 72
RB = lambda k: 176 + 4 * (k % 5)
for k in range(13):
    it = ["buffer_load_dwordx4 %s, v15, s[12:15], 0 offen @B%d" % (rng("v", RB(k)), k), "v_add_u32 v15, 1152, v15"]
    if 1 <= k <= 4 and not flag("noh"):
        hk = {1: (200, 216, 53), 2: (204, 217, 53), 3: (208, 216, 55), 4: (212, 217, 55)}[k]
        it.append("buffer_store_dwordx4 %s, v%d, s[16:19], s%d offen sc1" % (rng("v", hk[0]), hk[1], hk[2]))
    p = s.pour(it, ss(k) + (62 if k == 0 else 60)); assert p < ss(k + 1)
s.pour(["buffer_load_dwordx4 v[24:27], v9, s[16:19], s45 offen sc1 @F1"], ss(3) + 34)
s.put(ss(7), "s_barrier")
s.pour(["buffer_store_dword v29, v28, s[16:19], s7 offen sc1"], ss(7) + 34)
s.pour(["@vwait B0"] + sum([["v_lshlrev_b32 v%d, 16, v%d" % (120 + 2 * k, RB(0) + k), "v_and_b32 v%d, s38, v%d" % (121 + 2 * k, RB(0) + k)] for k in range(4)], []), ss(3) + 36)
def t_elem(k):
    h = k % 2
    C = 120 + 8 * h; N = 120 + 8 * (1 - h); A = 144; B = RB(k + 1)
    it = [dict(ins="ds_read_b128 %s, v14 offset:%d @t%d" % (rng("v", A), 576 * k, k), gap=8), "@wait t%d" % k, "@vwait B%d" % (k + 1)]
    O = 160
    for r in range(4):
        t = 136 + 2 * (r % 2)
        it += ["v_lshlrev_b32 v%d, 16, v%d" % (t, A + r), "v_and_b32 v%d, s38, v%d" % (t + 1, A + r),
               "v_lshlrev_b32 v%d, 16, v%d" % (N + 2 * r, B + r), "v_and_b32 v%d, s38, v%d" % (N + 2 * r + 1, B + r),
               "v_sub_f32 v%d, v%d, v%d" % (C + 2 * r, C + 2 * r, t), "v_sub_f32 v%d, v%d, v%d" % (C + 2 * r + 1, C + 2 * r + 1, t + 1),
               "v_sub_f32 v%d, v%d, v%d" % (t, N + 2 * r, t), "v_sub_f32 v%d, v%d, v%d" % (t + 1, N + 2 * r + 1, t + 1),
               "v_cvt_pk_bf16_f32 v%d, v%d, v%d" % (O + r, C + 2 * r, C + 2 * r + 1), "v_cvt_pk_bf16_f32 v%d, v%d, v%d" % (O + 4 + r, t, t + 1)]
    for q in range(2):
        it.append("ds_write_b64 v12, %s offset:%d" % (rng("v", O + 2 * q, 2), ARR + 576 * k + 8 * q))
        it.append("ds_write_b64 v12, %s offset:%d" % (rng("v", O + 4 + 2 * q, 2), 576 * k + 8 * q))
    return it
for k in range(12):
    p = s.pour(t_elem(k), ss(k + 4) + 2); assert p < ss(k + 5), (k, p - ss(k + 4))
p = s.pour(["@vwait F1"] + flag_check("L_sl1", 45), ss(5) + 36); assert p < ss(6)
s.put(ss(16) + 30, "s_waitcnt lgkmcnt(0)"); s.put(ss(16) + 30, "s_barrier")
s.pour(["buffer_load_dwordx4 v[24:27], v9, s[16:19], s46 offen sc1 @F2"], ss(13) + 34)
p = s.pour(["@vwait F2"] + flag_check("L_sl2", 46), ss(15) + 30); assert p < ss(16)
items = []
order = sorted(range(36), key=lambda t: [x for x in s.touch[acc("A", t)] if x < ss(18)][-1])
for t in order:
    tt = s.touch[acc("A", t)]
    last = [x for x in tt if x < ss(18)][-1]; nxt = [x for x in tt if x >= ss(18)][0]
    for r in range(4):
        items.append(dict(ins="v_accvgpr_read_b32 v%d, a%d" % (112 + 4 * t + r, acc("A", t)[1] + r), rel=last + 9, dl=nxt))
s.pour(items, ss(17))
if flag("early_st"):
    for q in (1, 2, 3, 5, 7, 9): s.put(ss(q), "@stamp")
else: s.put(ss(9), "@stamp")
vt = s.emit()
assert vt["W21"] == -10 and vt["W22"] == 0, vt
e("s_mov_b32 s36, 4")
stamp()
out.append(".p2align 6")
lab("L_pa")
s = Seg("pa")
for b in range(3): s.superstep(21 + b, "A", vm=10)
s.emit()
E("s_sub_u32 s36, s36, 1", "s_cmp_lg_u32 s36, 0", "s_cbranch_scc1 L_pa")
stamp()
s = Seg("B", vtags={"W33": -10, "W34": 0})
for sg in range(33, 54):
    s.superstep(sg, "A" if sg < 36 else "V", wload=(sg < 52), xnext=(sg < 53), xswitch="s44" if sg == 34 else None)
s.pour(["s_mul_i32 s46, s28, 12288", "s_add_u32 s46, s46, %d" % U0, "v_add_u32 v14, s46, v9", "s_xor_b32 s47, s28, 2",
        "s_mul_i32 s47, s47, 12288", "s_add_u32 s46, s47, %d" % U0, "s_add_u32 s47, s47, %d" % WS_WO, "v_add_u32 v15, s46, v9"], ss(33) + 36)
s.put(ss(35), "s_barrier")
def wr(r, i, reg):
    t = ROUNDS[r][i]; a = acc("A", t)
    return [dict(ins="ds_write_b64 v%d, %s offset:%d" % (reg, rng("a", a[1] + 2 * h, 2), 1024 * i + 8 * h), rd=a) for h in range(2)]
s.pour([x for i in range(12) for x in wr(0, (i + 8) % 12, 14)], ss(36))
RS = {1: 37, 2: 39, 3: 41}
for r in range(1, 4):
    sg = RS[r]
    s.put(ss(sg), "s_waitcnt lgkmcnt(0)"); s.put(ss(sg), "s_barrier")
    reg = 15 if r % 2 == 1 else 14
    items = []
    def rd(gq):
        for i in range(2):
            items.append("ds_read_b128 %s, v%d offset:%d @x%d_%d" % (rng("v", 16 + 8 * (gq % 2) + 4 * i), reg, 1024 * (2 * gq + i), r, gq))
    rd(0); rd(1)
    items[-1] = dict(ins=items[-1], gap=6)
    for gq in range(6):
        items.append("@wait x%d_%d" % (r, gq))
        for i in range(2):
            t = ROUNDS[r - 1][2 * gq + i]
            for k in range(4):
                items.append(dict(ins="v_add_f32 v%d, v%d, v%d" % (112 + 4 * t + k, 112 + 4 * t + k, 16 + 8 * (gq % 2) + 4 * i + k), wr=acc("V", t)))
        if gq + 2 < 6: rd(gq + 2)
        if r < 3:
            for i in range(2): items += wr(r, 2 * gq + i, reg)
    p = s.pour(items, ss(sg) + 2)
    assert p < ss(sg + 2) - 8, (r, p - ss(sg))
for sg in range(44, 50):
    it = []
    for i in range(2):
        it += [dict(ins="s_mov_b32 m0, s46", gap=1), "buffer_load_dwordx4 v9, s[16:19], s47 offen sc1 lds", "s_add_u32 s46, s46, 1024", dict(ins="s_add_u32 s47, s47, 1024", gap=3)]
    s.pour(it, ss(sg) + 36)
pre = ["s_mov_b32 s50, 0x4038aa3b", "s_mov_b32 s51, 0x4038aa3b", "s_mov_b32 s52, 0xbfb8aa3b", "s_mov_b32 s53, 0xbfb8aa3b",
       "s_mov_b32 s54, 1.0", "s_mov_b32 s55, 1.0", "s_mov_b32 s56, -2.0", "s_mov_b32 s57, -2.0", "v_mov_b32 v28, 1.0", "v_mov_b32 v29, 1.0",
       "s_mul_i32 s47, s2, 18432", "s_add_u32 s47, s47, %d" % WS_Z, "s_lshl_b32 s3, s28, 12", "s_add_u32 s45, s47, s3", "s_lshl_b32 s43, s29, 11",
       "s_sub_u32 s44, s45, s43", "s_add_u32 s45, s45, s43", "s_lshl_b32 s3, s28, 9", "s_add_u32 s46, s47, s3", "s_add_u32 s46, s46, 16384",
       "v_lshlrev_b32 v12, 3, v0", "s_lshl_b32 s3, s28, 11", "v_add_u32 v14, s3, v9", "s_xor_b32 s3, s3, 2048", "v_add_u32 v15, s3, v9",
       "s_lshl_b32 s3, s30, 13", "s_add_u32 s48, s47, s3", "s_add_u32 s48, s48, 18432", "s_add_u32 s48, s48, s43",
       "s_add_u32 s49, s48, 4096", "s_add_u32 s58, s46, 18432", "s_lshl_b32 s59, s2, 7", "s_add_u32 s59, s59, %d" % WS_F3,
       "v_mov_b32 v26, 0", "v_mov_b32 v27, s62",
       "s_lshl_b32 s3, s39, 1", "s_add_u32 s3, s3, s29", "s_lshl_b32 s3, s3, 10", "s_add_u32 s3, s3, %d" % U0,
       "v_add_u32 v16, s3, v9", "s_xor_b32 s3, s3, 1024", "v_add_u32 v17, s3, v9",
       "s_xor_b32 s3, s39, 1", "s_lshl_b32 s3, s3, 11", "s_add_u32 s3, s3, %d" % U0, "v_add_u32 v18, s3, v9",
       "s_mul_i32 s3, s39, 4608", "s_add_u32 s3, s3, %d" % (U0 + 36864), "v_add_u32 v19, s3, v12",
       "v_and_b32 v20, 15, v0", "v_lshrrev_b32 v21, 4, v0", "v_lshrrev_b32 v22, 1, v20", "v_lshlrev_b32 v22, 2, v22",
       "v_and_b32 v23, 1, v20", "v_add_u32 v22, v22, v23", "s_mul_i32 s3, s32, 16000", "s_add_u32 s3, s3, s31", "s_add_u32 s3, s3, 130",
       "s_lshl_b32 s4, s29, 6", "s_add_u32 s3, s3, s4", "s_lshl_b32 s4, s30, 1", "s_sub_u32 s3, s3, s4",
       "v_add_u32 v22, s3, v22", "v_mul_u32_u24 v22, 288, v22", "v_lshl_add_u32 v24, v21, 4, v22", "v_lshl_add_u32 v25, v21, 3, v22",
       "s_movk_i32 s63, 9216", "s_mov_b32 s36, 0x4000"]
s.pour(pre, ss(52) + 6)
s.put(ss(43), "@stamp")
s.emit()
stamp()
def act_tile(R, z):
    return ["v_pk_mul_f32 v[%d:%d], v[%d:%d], s[50:51]" % (R, R + 1, R, R + 1),
        "v_pk_mul_f32 v[%d:%d], v[%d:%d], s[52:53]" % (R + 2, R + 3, R + 2, R + 3),
        "v_exp_f32 v%d, v%d" % (R, R), "v_exp_f32 v%d, v%d" % (R + 1, R + 1),
        "v_exp_f32 v%d, v%d" % (R + 2, R + 2), "v_exp_f32 v%d, v%d" % (R + 3, R + 3),
        "v_pk_add_f32 v[%d:%d], v[%d:%d], s[54:55]" % (R, R + 1, R, R + 1),
        "v_rcp_f32 v%d, v%d" % (R, R),
        "v_pk_add_f32 v[%d:%d], v[%d:%d], s[54:55]" % (R + 2, R + 3, R + 2, R + 3),
        "v_rcp_f32 v%d, v%d" % (R + 1, R + 1),
        "v_rcp_f32 v%d, v%d" % (R + 2, R + 2), "v_rcp_f32 v%d, v%d" % (R + 3, R + 3),
        "v_pk_fma_f32 v[%d:%d], v[%d:%d], s[56:57], v[28:29]" % (R, R + 1, R, R + 1),
        "v_pk_mul_f32 v[%d:%d], v[%d:%d], v[%d:%d]" % (R, R + 1, R, R + 1, R + 2, R + 3),
        "v_cvt_pk_bf16_f32 v%d, v%d, v%d" % (z, R, R + 1)]
c("activation: partner-destined tiles (local 0..3)")
for n in range(4):
    for ml in range(4): E(*act_tile(112 + 4 * (ml * 8 + n), 32 + 4 * n + ml))
    e("buffer_store_dwordx4 %s, v9, s[16:19], s%d offen offset:%d sc1" % (rng("v", 32 + 4 * n), 45 if n < 2 else 44, 1024 * n))
for k in range(2): E(*act_tile(112 + 4 * (32 + k), 64 + k))
e("buffer_store_dwordx2 v[64:65], v12, s[16:19], s46 offen sc1")
c("sibling-destined tiles (local 6,7)")
for u in range(2):
    n = 6 + u
    for ml in range(4): E(*act_tile(112 + 4 * (ml * 8 + n), 32 + 4 * n + ml))
    e("ds_write_b128 v14, %s offset:%d" % (rng("v", 32 + 4 * n), 1024 * u))
E("s_waitcnt vmcnt(0) lgkmcnt(0)", "s_barrier", "s_cmp_lg_u32 s28, 0", "s_cbranch_scc1 L_noflag", "s_mov_b64 exec, 1",
  "buffer_store_dword v27, v26, s[16:19], s59 offen sc1", "s_mov_b64 exec, -1")
lab("L_noflag")
E("s_cmp_eq_u32 s33, 125", "s_cbranch_scc1 L_end")
stamp()
for u in range(2): e("ds_read_b128 %s, v15 offset:%d" % (rng("v", 72 + 4 * u), 1024 * u))
wo = []
for k in range(4):
    for no in range(9):
        wo.append("ds_read_b128 %s, v%d offset:%d" % (rng("a", (no * 4 + k) * 4), 16 + min(k, 2), no * 4096 + (1024 if k == 3 else 0)))
for no in range(9): wo.append("ds_read_b64 %s, v19 offset:%d" % (rng("a", 232 + 2 * no, 2), no * 512))
c("own tiles (local 4,5)")
k = 0
POLLAT = opt("pollat", 5)
tiles = [(ml * 8 + 4, 48 + ml) for ml in range(4)] + [(34, 66)] + [(ml * 8 + 5, 52 + ml) for ml in range(4)] + [(35, 68)]
for i, (t, z) in enumerate(tiles):
    if i == POLLAT: e("buffer_load_dword v30, v26, s[16:19], s59 offen offset:128 sc1")
    E(*wo[k:k + 5]); k += 5
    E(*act_tile(112 + 4 * t, z))
c("poll partner flag")
lab("L_poll")
E("s_waitcnt vmcnt(0)", "v_readfirstlane_b32 s3, v30", "s_cmp_eq_u32 s3, s62", "s_cbranch_scc1 L_go",
  "buffer_load_dword v30, v26, s[16:19], s59 offen offset:128 sc1", "s_sub_u32 s36, s36, 1", "s_cmp_lg_u32 s36, 0", "s_cbranch_scc1 L_poll")
lab("L_go")
for u in range(2):
    e("buffer_load_dwordx4 %s, v9, s[16:19], s48 offen offset:%d sc1" % (rng("v", 80 + 8 * u), 1024 * u))
    e("buffer_load_dwordx4 %s, v9, s[16:19], s49 offen offset:%d sc1" % (rng("v", 84 + 8 * u), 1024 * u))
    e("buffer_load_dword v%d, v12, s[16:19], s58 offen offset:%d sc1" % (67 + 2 * u, 4 * u))
e("s_waitcnt lgkmcnt(0)")
a2 = lambda u, no: 112 + (u * 9 + no) * 4
c("GEMM2 own half")
for k in range(2):
    for no in range(9):
        for u in range(2):
            z = (48 + 4 * u) if k == 0 else 72 + 4 * u
            d = rng("v", a2(u, no))
            e("v_mfma_f32_16x16x32_bf16 %s, %s, %s, %s" % (d, rng("a", (no * 4 + k) * 4), rng("v", z), "0" if k == 0 else d))
for u in range(2):
    e("s_waitcnt vmcnt(%d)" % (3 if u == 0 else 5))
    for k in range(2, 5):
        for no in range(9):
            d = rng("v", a2(u, no))
            if k < 4: e("v_mfma_f32_16x16x32_bf16 %s, %s, %s, %s" % (d, rng("a", (no * 4 + k) * 4), rng("v", 80 + 8 * u + 4 * (k - 2)), d))
            else: e("v_mfma_f32_16x16x16_bf16 %s, %s, %s, %s" % (d, rng("a", 232 + 2 * no, 2), rng("v", 66 + 2 * u, 2), d))
    so = "0" if u == 0 else "s63"
    for P in range(4):
        o = 184 + (u * 5 + P) * 4
        if P == 3: e("s_nop 3")
        for ee in range(2):
            d = a2(u, 2 * P + ee)
            e("v_cvt_pk_bf16_f32 v%d, v%d, v%d" % (o + 2 * ee, d, d + 1))
            e("v_cvt_pk_bf16_f32 v%d, v%d, v%d" % (o + 2 * ee + 1, d + 2, d + 3))
        e("buffer_store_dwordx4 %s, v24, s[24:27], %s offen offset:%d nt" % (rng("v", o), so, 64 * P))
    o = 184 + (u * 5 + 4) * 4; d = a2(u, 8)
    e("v_cvt_pk_bf16_f32 v%d, v%d, v%d" % (o, d, d + 1))
    e("v_cvt_pk_bf16_f32 v%d, v%d, v%d" % (o + 1, d + 2, d + 3))
    e("buffer_store_dwordx2 %s, v25, s[24:27], %s offen offset:256 nt" % (rng("v", o, 2), so))
if STAMPS:
    e("s_waitcnt vmcnt(0)")
    stamp("m")
    stamp_flush(nst[0])
    sys.stderr.write("stamps %d\n" % nst[0])
lab("L_end")
e("s_endpgm")
E(*slow)
lab("L_codeend")
out.append(""".section .rodata,"a"
.p2align 6
.amdhsa_kernel %s_kernel
  .amdhsa_next_free_vgpr 512
  .amdhsa_next_free_sgpr 102
  .amdhsa_accum_offset 256
  .amdhsa_group_segment_fixed_size 0
  .amdhsa_kernarg_size 48
  .amdhsa_user_sgpr_count 2
  .amdhsa_user_sgpr_kernarg_segment_ptr 1
  .amdhsa_system_sgpr_workgroup_id_x 1
.end_amdhsa_kernel""" % NAME)
lines = "\n".join(out).split("\n")
errs = hz.check([l for l in lines if "\\" not in l])
for x in errs[:40]: sys.stderr.write(x + "\n")
mre = re.compile(r"^v_mfma_f32_16x16x32_bf16 (\S+), (\S+), (\S+), (\S+)$")
def shrink(l):
    m = mre.match(l)
    if m and m.group(1) == m.group(4) and "\\" not in l: return "M %s,%s,%s" % (m.group(1), m.group(2), m.group(3))
    return l
txt = "\n".join(shrink(l) for l in lines) + "\n"
sys.stderr.write("%d hazards, %d bytes\n" % (len(errs), len(txt)))
args = [a for a in sys.argv[1:] if not a.startswith("--")]
open(args[0] if args else "cdna_kernels/%s.s" % NAME, "w").write(txt)
```

```python
import sys, re
import hz

NAME = "standalone__autoregressive_conv_wavenet__speech"
def flag(n): return ("--" + n) in sys.argv
def opt(name, default):
    return int(([a.split("=")[1] for a in sys.argv if a.startswith("--%s=" % name)] or [str(default)])[0])
STAMPS = flag("stamps"); PST = flag("pst")
WS_WO = 0x400000; WS_WO8 = WS_WO + 36864
WS_F1 = 0x420000; WS_F2 = 0x428000; WS_F1P = 0x429000; WS_F3 = 0x430000
ZS = 28672
WS_Z = 0x440000; WS_END = WS_Z + 252 * ZS
WS_ST = 0x1000000
ARR = 49152; D1 = 12288; D0 = D1 + ARR; U0 = D0 + ARR
BIG = 0x7f000000
HDR = """; Kernarg layout for this problem (48 bytes, ptrs only, base s[0:1]):
; @launch grid=(256,1,1) block=(256,1,1) lds=163840
"""
out = []
def e(s): out.extend(s.split("\n"))
def E(*l):
    for s in l: e(s)
def lab(s): out.append(s + ":")
def c(s): out.append("; " + s)

nst = [0]
def stamp_ins():
    r = 64 + 4 * nst[0]; nst[0] += 1
    return "s_memtime s[%d:%d]\ns_memrealtime s[%d:%d]\ns_waitcnt lgkmcnt(0)" % (r, r + 1, r + 2, r + 3)
EST = flag("est")
def stamp_on(kind):
    if EST: return STAMPS and kind == "e"
    if kind == "e": return False
    return STAMPS and (kind == "a" or (kind == "p") == PST)
def stamp(kind="m"):
    if stamp_on(kind) and nst[0] < 9: e(stamp_ins())
def stamp_flush(n):
    E("s_lshl_b32 s3, s2, 2", "s_add_u32 s3, s3, s28", "s_mul_i32 s3, s3, %d" % (n * 16), "s_add_u32 s3, s3, %d" % WS_ST,
      "s_add_u32 s4, s60, s3", "s_addc_u32 s5, s61, 0", "v_mov_b32 v4, 0")
    for i in range(n):
        for k in range(4): e("v_mov_b32 v%d, s%d" % (8 + k, 64 + 4 * i + k))
        e("global_store_dwordx4 v4, v[8:11], s[4:5] offset:%d" % (16 * i)); e("s_nop 1")

def rng(k, r, n=4): return "%s[%d:%d]" % (k, r, r + n - 1)
def wbuf(b, ab, i):
    off = 20 * ab + 4 * i
    if b >= 3: return ("a", 48 * (b - 3) + off)
    return ("v", 32 + off) if b == 0 else ("v", 72 + off) if b == 1 else ("a", 192 + off)
def gf(b): return 144 + 4 * b
N8 = [0, 1, 4, 5]
col = lambda n: [ml * 8 + n for ml in range(4)]
ROUNDS = [col(4) + col(6) + col(0), col(5) + col(7) + col(1), [34, 35] + col(3) + [32, 33] + col(2)]
APOS = {t: i for i, t in enumerate(sum(ROUNDS, []))}
def acc(s, t): return ("a", 4 * APOS[t]) if s == "A" else ("v", 112 + 4 * t)
def xread(b, sg):
    pl, k = divmod(b, 3)
    jl, cc0 = divmod(4 * (sg % 18), 18)
    reg = (3 if pl % 2 == 0 else 10) if cc0 != 16 else (13 if pl % 2 == 0 else 11)
    return "ds_read_b128 %s, v%d offset:%d" % (rng("a", gf(b)), reg, (2 * pl + k) * 4608 + (3 - jl) * 576 + cc0 * 16)
SNAKE = not flag("nosnake")
def bursts():
    r = []
    for pl in range(4):
        e_, o_ = 2 * pl, 2 * pl + 1
        if not SNAKE: r += [(3 * pl, [(1, e_, 0)]), (3 * pl + 1, [(0, e_, 0), (1, o_, 0)]), (3 * pl + 2, [(0, o_, 0)])]
        elif pl % 2 == 0: r += [(3 * pl, [(1, e_, 0)]), (3 * pl + 1, [(1, o_, 1), (0, e_, 0)]), (3 * pl + 2, [(0, o_, 1)])]
        else: r += [(3 * pl + 2, [(0, o_, 0)]), (3 * pl + 1, [(0, e_, 1), (1, o_, 0)]), (3 * pl, [(1, e_, 1)])]
    return r
BUR = bursts()
FORD = [b for b, _ in BUR]

def cost_of(ins):
    if "\n" in ins: return sum(cost_of(x) for x in ins.split("\n"))
    if ins.startswith("@") or ins.startswith("s_waitcnt") or ins.startswith("s_barrier") or ins.endswith(":"): return 0
    if ins.startswith("ds_write_b128") or ins.startswith("buffer_store_dwordx4"): return 5
    if ins.startswith("ds_write_b64"): return 3
    if ins.startswith("ds_write") or ins.startswith("buffer_store"): return 2
    if ins.split()[0] in hz.TRANS: return 2
    return 1
def is_valu(ins): return ins.startswith("v_")

def wloads(sg, sregs=(34, 35), b=None):
    if b is None: b = sg % 3
    r = []
    for ab in (1, 0):
        for i in range(5):
            w = wbuf(b, ab, i)
            tag = " @W%d" % sg if (ab, i) == (0, 4) else ""
            if i < 4: r.append("buffer_load_dwordx4 %s, v1, s[16:19], s%d offen offset:%d sc1%s" % (rng(*w), sregs[ab], 1024 * i, tag))
            else: r.append("buffer_load_dwordx4 %s, v2, s[16:19], s%d offen sc1%s" % (rng(*w), sregs[ab], tag))
    return r

class Seg:
    CAP = 2
    def __init__(s, name, vtags=None):
        s.name = name; s.mf = []; s.fill = []; s.used = []; s.burst = {}; s.touch = {}; s.ss0 = {}; s.seq = 0
        s.vtags = dict(vtags or {})
    def slot(s, ins, a):
        s.touch.setdefault(a, []).append(len(s.mf))
        s.mf.append(ins); s.fill.append([]); s.used.append(0)
    def put(s, sl, ins, seq=-1):
        s.fill[sl].append((ins, seq)); s.used[sl] += cost_of(ins)
    def superstep(s, sg, aset, vm=None, xswitch=None, wload=True, xnext=True, wstart=3, wgap=3):
        b = sg % 3
        base = len(s.mf); s.ss0[sg] = base
        for bi, (fr, work) in enumerate(BUR):
            s.burst[(sg, bi)] = len(s.mf)
            x = rng("a", gf(fr))
            for ab, n, desc in work:
                tl = [(ml, ml * 8 + n) for ml in range(4)]
                if n in N8: tl.append((4, 32 + N8.index(n)))
                if desc: tl.reverse()
                for wi, t in tl:
                    a = acc(aset, t); w = wbuf(b, ab, wi)
                    s.slot("v_mfma_f32_16x16x32_bf16 %s, %s, %s, %s" % (rng(*a), rng(*w), x, rng(*a)), a)
        assert len(s.mf) - base == 72
        s.ss0[sg + 1] = len(s.mf)
        s.put(base, "@vwait W%d" % sg if vm is None else "s_waitcnt vmcnt(%d)" % vm)
        s.put(base, "s_waitcnt lgkmcnt(1)")
        s.put(base + 1, xread(FORD[11], sg))
        s.put(s.burst[(sg, 6)], "s_waitcnt lgkmcnt(2)")
        if xswitch:
            s.put(base + 2, "v_add_u32 v3, %s, v3" % xswitch); s.put(base + 2, "v_add_u32 v10, %s, v10" % xswitch)
            s.put(base + 4, "v_add_u32 v13, %s, v13" % xswitch); s.put(base + 4, "v_add_u32 v11, %s, v11" % xswitch)
        for bi in range(11): s.put(s.burst[(sg, bi + 1)] + 1, xread(FORD[bi], sg + 1))
        if wload:
            it = [dict(ins=x, gap=wgap) for x in wloads(sg + 2)] + ["s_add_u32 s34, s34, 18432", "s_add_u32 s35, s35, 18432"]
            s.pour(it, base + wstart)
    def pairpass(s, pl, cs, bufs, firstpass):
        bl = BUR[3 * pl:3 * pl + 3]
        pend = None
        for cc in cs:
            s.ss0[(pl, cc)] = len(s.mf)
            for fr, work in bl:
                b0 = len(s.mf)
                x = rng("a", gf(fr))
                for ab, n, desc in work:
                    tl = [(ml, ml * 8 + n) for ml in range(4)]
                    if n in N8: tl.append((4, 32 + N8.index(n)))
                    if desc: tl.reverse()
                    for wi, t in tl:
                        a = acc("V", t); w = wbuf(bufs[cc], ab, wi)
                        s.slot("v_mfma_f32_16x16x32_bf16 %s, %s, %s, %s" % (rng(*a), rng(*w), x, rng(*a)), a)
                if firstpass and fr == bl[0][0]: s.put(b0, "@vwait W%d" % cc)
                if cc != cs[0]: s.put(b0, "@wait g%d_%d" % (fr, cc))
                if pend: s.put(b0 + 1, pend)
                pend = xread(fr, cc + 1) + " @g%d_%d" % (fr, cc + 1) if cc != cs[-1] else None
    def pour(s, items, start):
        s.seq += 1; seq = s.seq; p = start
        for it in items:
            if isinstance(it, str): it = dict(ins=it)
            ins = it["ins"]; cost = cost_of(ins)
            p = max(p, it.get("rel", 0))
            while True:
                assert p < len(s.mf), "pour overflow: " + ins
                ok = s.used[p] + cost <= s.CAP or (s.used[p] == 0)
                if ok and not is_valu(ins) and any(is_valu(x) and q == seq for x, q in s.fill[p]): ok = False
                a = it.get("rd") or it.get("wr")
                if ok and a:
                    for t in s.touch.get(a, []):
                        if t < p <= t + 8: ok = False
                        if it.get("wr") and t - 2 < p <= t: ok = False
                if ok: break
                p += 1
            assert p <= it.get("dl", 1 << 30), "deadline miss: %s %d" % (ins, p)
            s.put(p, ins, seq)
            p += it.get("gap", 0)
        return p
    def emit(s):
        lin = []
        for m, f in zip(s.mf, s.fill):
            lin += [x for x, q in f if not is_valu(x)] + [x for x, q in f if is_valu(x)]
            lin.append(m)
        cnt = 0; tags = {}; vc = 0; vt = dict(s.vtags)
        for x in lin:
            if x.startswith("@wait "):
                e("s_waitcnt lgkmcnt(%d)" % min(cnt - tags[x[6:]], 15)); continue
            if x.startswith("@vwait "):
                n = min(vc - vt[x[7:]], 63); assert n >= 0
                e("s_waitcnt vmcnt(%d)" % n); continue
            if x == "@stamp":
                stamp("m"); continue
            tag = None
            if " @" in x: x, tag = x.split(" @")
            if x.startswith("ds_"): cnt += 1
            if x.startswith("buffer_") or x.startswith("global_"): vc += 1
            if tag:
                if x.startswith("ds_"): tags[tag] = cnt
                else: vt[tag] = vc
            e(x)
        over = sum(max(0, u - s.CAP) for u in s.used)
        sys.stderr.write("seg %s: %d mfma, overflow units %d\n" % (s.name, len(s.mf), over))
        return {k: v - vc for k, v in vt.items()}
def flat(items):
    for it in items:
        if isinstance(it, dict):
            e(it["ins"].split(" @")[0])
            if it.get("gap"): e("s_nop 0")
        else: e(it.split(" @")[0])

EARLY = opt("early", 0); MID = opt("mid", 0)
out.append(HDR + '.amdgcn_target "amdgcn-amd-amdhsa--gfx950"\n.text')
out.append(".macro M d, a, b\nv_mfma_f32_16x16x32_bf16 \\d, \\a, \\b, \\d\n.endm")
out.append(".globl %s_kernel\n.p2align 8\n.type %s_kernel,@function" % (NAME, NAME))
lab(NAME + "_kernel")
E("s_cmp_ge_u32 s2, 256", "s_cbranch_scc1 L_end")
c("XCD-friendly remap: XCD k=id&7 gets a contiguous range of 32/31/31/32 logical workgroups per batch")
E("s_mov_b32 s100, s2", "s_and_b32 s3, s2, 3", "s_lshr_b32 s4, s2, 3", "s_lshl_b32 s5, s3, 5", "s_sub_u32 s6, s3, 1", "s_max_i32 s7, s6, 0",
  "s_sub_u32 s5, s5, s7", "s_cmp_lt_u32 s6, 2", "s_cselect_b32 s6, 31, 32", "s_cmp_ge_u32 s4, s6", "s_cbranch_scc1 L_end",
  "s_add_u32 s5, s5, s4", "s_bitcmp1_b32 s2, 2", "s_cselect_b32 s2, 126, 0", "s_add_u32 s2, s2, s5")
stamp("a")
E("s_load_dwordx8 s[4:11], s[0:1], 0", "s_load_dwordx4 s[56:59], s[0:1], 32", "s_memrealtime s[54:55]",
  "v_lshrrev_b32 v1, 6, v0", "v_mov_b32 v19, v0", "v_and_b32 v0, 63, v0", "v_readfirstlane_b32 s28, v1", "v_lshlrev_b32 v9, 4, v0")
c("weight-production unit: gw = 4*phys + wave = ((ql*4 + kh*2 + AB)*3 + third)")
E("s_lshl_b32 s63, s100, 2", "s_add_u32 s63, s63, s28", "s_mul_i32 s3, s63, 21846", "s_lshr_b32 s48, s3, 16",
  "s_mul_i32 s3, s48, 3", "s_sub_u32 s49, s63, s3", "s_lshr_b32 s51, s48, 2", "s_mul_i32 s3, s51, 3641", "s_lshr_b32 s50, s3, 16",
  "s_mul_i32 s3, s50, 18", "s_sub_u32 s51, s51, s3", "s_and_b32 s3, s48, 2", "s_lshl_b32 s3, s3, 1", "s_add_u32 s50, s50, s3",
  "s_and_b32 s3, s48, 1", "s_lshl_b32 s3, s3, 3", "s_add_u32 s50, s50, s3",
  "s_mul_i32 s52, s50, 165888", "s_mul_i32 s3, s51, 4608", "s_add_u32 s52, s52, s3", "s_add_u32 s53, s52, 82944",
  "s_mul_i32 s3, s49, 6", "v_lshrrev_b32 v20, 3, v0", "v_add_u32 v20, s3, v20", "v_and_b32 v21, 6, v0",
  "v_lshl_add_u32 v21, v20, 3, v21", "v_and_b32 v22, 1, v0", "v_mul_u32_u24 v22, 144, v22", "v_add_lshl_u32 v24, v21, v22, 1")
c("tile decode")
E("s_cmp_ge_u32 s2, 126", "s_cselect_b32 s32, 1, 0", "s_mul_i32 s3, s32, 126", "s_sub_u32 s33, s2, s3", "s_and_b32 s39, s33, 1",
  "s_lshl_b32 s31, s33, 7", "s_sub_u32 s31, s31, 128", "s_and_b32 s29, s28, 1", "s_lshr_b32 s30, s28, 1",
  "s_sub_u32 s3, s31, 60", "s_mul_i32 s3, s3, 288",
  "v_mul_u32_u24 v112, 1821, v19", "v_lshlrev_b32 v113, 4, v19", "v_add_u32 v113, s3, v113", "s_movk_i32 s42, 576",
  "s_lshl_b32 s40, s28, 10", "s_add_u32 s41, s40, %d" % D0, "s_add_u32 s40, s40, %d" % U0,
  "s_mul_i32 s3, s32, 4608000", "s_mov_b32 s22, 2571264", "s_mov_b32 s23, 0x20000", "s_mov_b32 s14, 4608000", "s_mov_b32 s15, 0x20000",
  "s_mov_b32 s46, 256", "s_mov_b32 s47, 0x20000", "s_mov_b32 s18, %d" % WS_END, "s_mov_b32 s19, 0x20000",
  "v_mov_b32 v30, 0", "v_mov_b32 v216, %d" % BIG, "v_mov_b32 v217, %d" % BIG, "s_waitcnt lgkmcnt(0)")
stamp("p")
E("s_mov_b32 s20, s6", "s_and_b32 s21, s7, 0xffff", "s_add_u32 s12, s4, s3", "s_addc_u32 s13, s5, 0", "s_and_b32 s13, s13, 0xffff",
  "s_mov_b32 s44, s56", "s_and_b32 s45, s57, 0xffff", "s_cmp_lg_u32 s63, 0", "s_cbranch_scc1 L_noep")
c("the first wave publishes a launch-unique tag")
E("s_or_b32 s54, s54, 1", "v_mov_b32 v29, s54", "s_mov_b64 exec, 1", "buffer_store_dword v29, v30, s[44:47], 0 offen sc1", "s_mov_b64 exec, -1")
lab("L_noep")
E("s_cmp_ge_u32 s63, 864", "s_cbranch_scc1 L_wo_ld", "s_mov_b32 exec_hi, 0xffff")
for r in range(8): e("buffer_load_dword v%d, v24, s[20:23], s52 offen offset:%d" % (32 + r, r * 576))
for r in range(8): e("buffer_load_dword v%d, v24, s[20:23], s53 offen offset:%d" % (40 + r, r * 576))
E("s_mov_b64 exec, -1", "s_branch L_ld_done")
lab("L_wo_ld")
c("w_o units: W = gw-864 (<54)")
E("s_mov_b32 s20, s8", "s_and_b32 s21, s9, 0xffff", "s_mov_b32 s22, 41472", "s_sub_u32 s48, s63, 864", "s_lshr_b32 s49, s48, 2",
  "s_sub_u32 s50, s48, 36", "s_cmp_ge_i32 s50, 9", "s_cselect_b32 s51, 1, 0", "s_mul_i32 s3, s51, 9", "s_sub_u32 s52, s50, s3",
  "s_cmp_lt_u32 s48, 36", "s_cselect_b32 s49, s49, s52",
  "v_and_b32 v20, 15, v0", "v_lshrrev_b32 v21, 4, v0", "v_lshrrev_b32 v22, 2, v20", "v_lshlrev_b32 v22, 4, v22", "v_and_b32 v23, 3, v20",
  "v_lshl_add_u32 v22, v23, 1, v22", "s_lshr_b32 s3, s49, 1", "s_lshl_b32 s3, s3, 6", "s_and_b32 s52, s49, 1", "s_lshl_b32 s52, s52, 3",
  "s_add_u32 s3, s3, s52", "v_lshlrev_b32 v23, 1, v20", "s_cmp_eq_u32 s49, 8", "s_cselect_b64 vcc, -1, 0",
  "v_cndmask_b32 v22, v22, v23, vcc", "v_add_u32 v22, s3, v22", "v_mul_u32_u24 v23, 576, v21", "v_add_u32 v24, v22, v23",
  "s_and_b32 s3, s48, 3", "s_lshr_b32 s52, s3, 1", "s_mul_i32 s52, s52, %d" % (72 * 288), "s_and_b32 s3, s3, 1",
  "s_mul_i32 s3, s3, %d" % (32 * 288), "s_add_u32 s52, s52, s3", "s_mul_i32 s53, s51, %d" % (72 * 288), "s_add_u32 s53, s53, %d" % (64 * 288),
  "s_cmp_eq_u32 s51, 0", "s_mov_b32 s3, %d" % (-72 * 288), "s_cselect_b32 s54, %d, s3" % (72 * 288),
  "s_cmp_lt_u32 s48, 36", "s_cselect_b32 s52, s52, s53", "s_cselect_b32 s54, %d, s54" % (8 * 288))
for i in range(4):
    e("buffer_load_ushort v%d, v24, s[20:23], s52 offen" % (32 + i))
    e("buffer_load_ushort v%d, v24, s[20:23], s52 offen offset:288" % (36 + i))
    if i < 3:
        e("s_add_u32 s52, s52, s54")
        if i == 1: E("s_cmp_lt_u32 s48, 36", "s_cselect_b32 s52, s52, 0", "s_cselect_b32 s54, s54, 0")
E("s_mov_b32 s53, 0", "s_mov_b32 s55, 0")
lab("L_ld_done")
ndma = [0]
def dma_u0(n):
    for i in range(n):
        k = ndma[0]; ndma[0] += 1
        E("v_lshrrev_b32 v114, 16, v112", "s_mov_b32 m0, s40", "v_mad_u32_u24 v%d, v114, s42, v113" % (232 + k),
          "v_add_u32 v112, %d, v112" % (256 * 1821), "buffer_load_dwordx4 v%d, s[12:15], 0 offen lds" % (232 + k),
          "v_add_u32 v113, 4096, v113", "s_add_u32 s40, s40, 4096")
XPF = opt("xpf", 1)
NXP = 0
if XPF:
    c("pull the lines of this workgroup's own 128 rows that hold u0 data towards L2 (40 lanes per wave)")
    NXP = 1
    E("s_add_u32 s101, s31, 128", "s_mul_i32 s101, s101, 288", "s_mul_i32 s3, s28, 9216", "s_add_u32 s101, s101, s3",
      "v_min_u32 v116, 39, v0", "v_mul_u32_u24 v117, 13108, v116", "v_lshrrev_b32 v117, 16, v117",
      "v_mul_u32_u24 v118, %d, v117" % (1152 - 640), "v_lshl_add_u32 v117, v116, 7, v118",
      "buffer_load_dword v31, v117, s[12:15], s101 offen")
dma_u0(EARLY)
stamp("p")
E("s_mov_b32 s60, s58", "s_mov_b32 s61, s59", "s_mov_b32 s16, s58", "s_and_b32 s17, s59, 0xffff", "s_mov_b32 s38, 0xffff0000",
  "s_cmp_ge_u32 s63, 864", "s_cbranch_scc1 L_wo_st")
c("W production: destination addressing")
E("s_and_b32 s54, s50, 7", "s_lshr_b32 s55, s50, 3", "s_mul_i32 s3, s54, 18", "s_add_u32 s3, s3, s51", "s_lshr_b32 s52, s3, 2",
  "s_and_b32 s53, s3, 3", "s_lshr_b32 s54, s54, 2", "s_mul_i32 s3, s54, 36", "s_add_u32 s3, s3, s52", "s_mul_i32 s3, s3, 18432",
  "s_mul_i32 s55, s55, 9216", "s_add_u32 s3, s3, s55", "s_lshl_b32 s53, s53, 8", "s_add_u32 s52, s3, s53",
  "s_cmp_eq_u32 s54, 0", "s_cselect_b32 s53, 2, 1", "s_cselect_b32 s55, 1, 2",
  "s_mul_i32 s53, s53, %d" % (18 * 18432), "s_mul_i32 s55, s55, %d" % (18 * 18432), "s_add_u32 s53, s53, s52", "s_add_u32 s55, s55, s52",
  "s_mul_i32 s3, s28, 4608", "s_add_u32 s3, s3, %d" % D1, "v_lshlrev_b32 v25, 5, v0", "v_add_u32 v25, s3, v25", "v_add_u32 v26, s3, v9",
  "s_mul_i32 s3, s49, 6", "v_lshrrev_b32 v20, 4, v0", "v_add_u32 v20, s3, v20", "v_add_u32 v21, 3, v20",
  "v_mov_b32 v27, %d" % (1990656 - 9216), "v_and_b32 v28, 15, v0", "v_lshlrev_b32 v28, 4, v28", "s_mov_b32 exec_hi, 0xffff")
for h in range(2):
    E("v_cmp_le_u32 vcc, 9, v%d" % (20 + h), "v_lshl_add_u32 v%d, v%d, 10, v28" % (20 + h, 20 + h), "s_nop 0",
      "v_cndmask_b32 v29, 0, v27, vcc", "v_add_u32 v%d, v%d, v29" % (216 + h, 20 + h))
E("s_mov_b32 s36, 0x05040100", "s_mov_b32 s37, 0x07060302", "s_waitcnt vmcnt(%d)" % (EARLY + NXP))
stamp("p")
for r in range(8):
    E("v_lshlrev_b32 v64, 16, v%d" % (32 + r), "v_and_b32 v65, s38, v%d" % (32 + r), "v_lshlrev_b32 v66, 16, v%d" % (40 + r),
      "v_and_b32 v67, s38, v%d" % (40 + r), "v_pk_add_f32 v[%d:%d], v[64:65], v[66:67]" % (72 + 2 * r, 73 + 2 * r))
for h in range(2):
    for i in range(4): e("v_cvt_pk_bf16_f32 v%d, v%d, v%d" % (88 + 4 * h + i, 72 + 4 * i + h, 72 + 4 * i + 2 + h))
E("ds_write_b128 v25, v[88:91]", "ds_write_b128 v25, v[92:95] offset:16", "ds_read_b128 v[88:91], v26", "ds_read_b128 v[92:95], v26 offset:768")
for h in range(2):
    for i in range(4): e("v_perm_b32 v%d, v%d, v%d, s%d" % (48 + 4 * h + i, 32 + 2 * i + 1, 32 + 2 * i, 36 + h))
E("s_waitcnt lgkmcnt(0)", "buffer_store_dwordx4 v[88:91], v216, s[16:19], s52 offen sc1", "buffer_store_dwordx4 v[92:95], v217, s[16:19], s52 offen sc1")
for h in range(2):
    for i in range(4): e("v_perm_b32 v%d, v%d, v%d, s%d" % (56 + 4 * h + i, 40 + 2 * i + 1, 40 + 2 * i, 36 + h))
E("ds_write_b128 v25, v[48:51] offset:1536", "ds_write_b128 v25, v[52:55] offset:1552",
  "ds_write_b128 v25, v[56:59] offset:3072", "ds_write_b128 v25, v[60:63] offset:3088")
for k in range(4): e("ds_read_b128 %s, v26 offset:%d" % (rng("v", 200 + 4 * k), 1536 + 768 * k))
E("s_mov_b64 exec, -1", "s_branch L_st_done")
lab("L_wo_st")
E("s_cmp_ge_u32 s48, 54", "s_cbranch_scc1 L_st_done", "s_waitcnt vmcnt(%d)" % (EARLY + NXP))
for i in range(4): e("v_lshl_or_b32 v%d, v%d, 16, v%d" % (32 + i, 36 + i, 32 + i))
E("s_cmp_ge_u32 s48, 36", "s_cbranch_scc1 L_wo8_st", "s_lshl_b32 s3, s48, 10", "s_add_u32 s3, s3, %d" % WS_WO,
  "buffer_store_dwordx4 v[32:35], v9, s[16:19], s3 offen sc1", "s_branch L_st_done")
lab("L_wo8_st")
E("v_lshlrev_b32 v25, 3, v0", "s_lshl_b32 s3, s50, 9", "s_add_u32 s3, s3, %d" % WS_WO8, "buffer_store_dwordx2 v[32:33], v25, s[16:19], s3 offen sc1")
lab("L_st_done")
stamp("p")
e("buffer_load_dword v29, v30, s[44:47], 0 offen sc1")
dma_u0(MID)
E("s_mov_b32 s36, 0x4000", "v_cmp_eq_u32 vcc, 0, v19", "v_mov_b32 v28, %d" % BIG, "s_lshl_b32 s4, s100, 7", "s_add_u32 s4, s4, %d" % WS_F1,
  "v_cndmask_b32 v28, v28, 0, vcc", "s_lshl_b32 s5, s2, 2", "s_add_u32 s5, s5, %d" % WS_F1P,
  "s_waitcnt vmcnt(%d)" % MID, "s_branch L_epchk")
lab("L_ep")
E("buffer_load_dword v29, v30, s[44:47], 0 offen sc1", "s_waitcnt vmcnt(0)")
lab("L_epchk")
E("v_readfirstlane_b32 s62, v29", "s_cmp_lg_u32 s62, 0", "s_cbranch_scc1 L_epok", "s_sub_u32 s36, s36, 1", "s_cmp_lg_u32 s36, 0", "s_cbranch_scc1 L_ep")
lab("L_epok")
stamp("p")
c("publish (only thread 0 has an in-range offset in v28)")
E("s_waitcnt lgkmcnt(0)", "s_barrier", "buffer_store_dword v29, v28, s[16:19], s4 offen sc1", "buffer_store_dword v29, v28, s[16:19], s5 offen sc1")
dma_u0(12 - EARLY - MID)
if XPF:
    c("... and the remaining lines (32 lanes per wave)")
    E("v_and_b32 v116, 31, v0", "v_lshrrev_b32 v118, 2, v116", "v_mul_u32_u24 v118, %d, v118" % (1152 - 512), "v_lshl_add_u32 v118, v116, 7, v118",
      "buffer_load_dword v31, v118, s[12:15], s101 offen offset:640")
c("prefetch the code into L2")
e("s_getpc_b64 s[46:47]")
lab("L_pc")
c("each workgroup of an XCD touches a 2 KiB slice (8 lines of 64 B per wave)")
E("s_lshr_b32 s3, s100, 3", "s_lshl_b32 s3, s3, 2", "s_add_u32 s3, s3, s28", "s_lshl_b32 s3, s3, 9",
  "v_and_b32 v20, 7, v0", "v_lshlrev_b32 v20, 6, v20", "v_add_u32 v20, s3, v20", "v_min_u32 v22, L_codeend-L_pc-4, v20",
  "global_load_dword v31, v22, s[46:47]")
c("misc setup")
E("s_mov_b32 s24, s10", "s_and_b32 s25, s11, 0xffff", "s_mov_b32 s26, 9216000", "s_mov_b32 s27, 0x20000",
  "s_lshl_b32 s3, s39, 1", "s_add_u32 s3, s3, s30", "s_mul_i32 s34, s3, %d" % (54 * 18432), "s_add_u32 s35, s34, 9216",
  "s_lshl_b32 s3, s29, 12", "v_add_u32 v1, s3, v9", "v_add_u32 v2, 8192, v9", "v_and_b32 v20, 15, v0", "v_lshrrev_b32 v21, 4, v0",
  "s_lshl_b32 s3, s30, 3", "s_sub_u32 s3, 8, s3", "v_add_u32 v3, s3, v20", "v_mul_u32_u24 v3, 288, v3", "v_lshl_add_u32 v3, v21, 4, v3",
  "s_mul_i32 s3, s29, 9216", "s_sub_u32 s37, %d, s3" % U0, "s_add_u32 s3, s3, %d" % U0,
  "v_add_u32 v10, s37, v3", "v_add_u32 v3, s3, v3", "v_lshrrev_b32 v21, 1, v21", "v_mul_u32_u24 v21, 864, v21",
  "v_sub_u32 v13, v3, v21", "v_sub_u32 v11, v10, v21",
  "s_cmp_eq_u32 s30, 0", "s_mov_b32 s3, %d" % (D1 - U0), "s_cselect_b32 s43, %d, s3" % (D0 - U0),
  "s_mov_b32 s3, %d" % ARR, "s_cselect_b32 s44, %d, s3" % (-ARR))
c("transform: strip addressing (seg, col): v12 LDS d1 (+ARR: d0), v14 LDS u0, v15 global u1m")
E("v_min_u32 v20, 251, v19", "v_mul_u32_u24 v21, 1821, v20", "v_lshrrev_b32 v21, 16, v21", "v_mul_u32_u24 v22, %d, v21" % (6912 - 576),
  "v_lshl_add_u32 v22, v20, 4, v22", "v_add_u32 v12, %d, v22" % D1, "v_add_u32 v14, %d, v22" % U0,
  "v_mul_u32_u24 v21, 6912, v21", "s_sub_u32 s3, s31, 62", "s_mul_i32 s3, s3, 288", "v_add3_u32 v15, v22, v21, s3",
  "s_lshl_b32 s7, s2, 2", "s_add_u32 s7, s7, %d" % WS_F2, "s_mov_b32 s45, %d" % WS_F1P, "s_mov_b32 s46, %d" % WS_F2,
  "s_add_u32 s36, s34, 18432", "s_add_u32 s37, s35, 18432", "s_add_u32 s48, s36, 18432", "s_add_u32 s49, s37, 18432")
stamp("p")
c("first stage: flags of the 96 earliest producers (24 per wave)")
E("s_mul_i32 s6, s28, %d" % (24 * 128), "s_add_u32 s6, s6, %d" % WS_F1, "v_min_u32 v25, 23, v0", "v_lshlrev_b32 v25, 7, v25", "s_mov_b32 s5, 0x4000")
lab("L_poll1")
E("buffer_load_dword v24, v25, s[16:19], s6 offen sc1", "s_waitcnt vmcnt(0)", "v_cmp_ne_u32 vcc, s62, v24", "s_nop 1", "s_cmp_eq_u64 vcc, 0",
  "s_cbranch_scc1 L_poll1_ok", "s_sleep 2", "s_sub_u32 s5, s5, 1", "s_cmp_lg_u32 s5, 0", "s_cbranch_scc1 L_poll1")
lab("L_poll1_ok")
e("s_barrier")
stamp("p")
flat(wloads(0))
for bi in range(11): e(xread(FORD[bi], 0))
if STAMPS: e("s_waitcnt vmcnt(0)")
stamp("a")

slow = []
def flag_check(name, sreg):
    it = ["v_xor_b32 v24, s62, v24", "v_xor_b32 v25, s62, v25", "v_xor_b32 v26, s62, v26", "v_xor_b32 v27, s62, v27",
          "v_or3_b32 v24, v24, v25, v26", "v_or_b32 v24, v24, v27", dict(ins="v_cmp_ne_u32 s[4:5], 0, v24", gap=2),
          "s_and_b32 s5, s5, 0x7fffffff", "s_cmp_lg_u64 s[4:5], 0\ns_cbranch_scc1 %s\n%s_ret:" % (name, name)]
    slow.extend([name + ":", "s_mov_b32 s6, 0x4000", name + "_l:", "buffer_load_dwordx4 v[24:27], v9, s[16:19], s%d offen sc1" % sreg, "s_waitcnt vmcnt(0)"]
                + [x if isinstance(x, str) else x["ins"] + "\ns_nop 1" for x in it[:-1]]
                + ["s_cmp_eq_u64 s[4:5], 0", "s_cbranch_scc1 %s_ret" % name, "s_sleep 2", "s_sub_u32 s6, s6, 1", "s_cmp_lg_u32 s6, 0",
                   "s_cbranch_scc1 %s_l" % name, "s_branch %s_ret" % name])
    return it

s = Seg("A", vtags={"W0": 0})
for sg in range(48):
    s.superstep(sg, "A" if sg < 36 else "V", wload=(0 < sg < 47), xswitch={17: "s43", 35: "s44"}.get(sg))
ss = lambda sg: s.ss0[sg]
seen = set()
for i in range(72):
    d = s.mf[i].split()[1].rstrip(",")
    if d not in seen:
        seen.add(d); s.mf[i] = s.mf[i][:s.mf[i].rindex(",")] + ", 0"
it = [dict(ins=x, gap=2) for x in wloads(1, (36, 37))] + [dict(ins=x, gap=3) for x in wloads(2, (48, 49))]
it += ["s_add_u32 s34, s34, %d" % (3 * 18432), "s_add_u32 s35, s35, %d" % (3 * 18432)]
p = s.pour(it, 1); assert p < 72
RB = lambda k: 176 + 4 * (k % 5)
for k in range(13):
    it = ["buffer_load_dwordx4 %s, v15, s[12:15], 0 offen @B%d" % (rng("v", RB(k)), k), "v_add_u32 v15, 1152, v15"]
    if 1 <= k <= 4 and not flag("noh"):
        hk = {1: (200, 216, 53), 2: (204, 217, 53), 3: (208, 216, 55), 4: (212, 217, 55)}[k]
        it.append("buffer_store_dwordx4 %s, v%d, s[16:19], s%d offen sc1" % (rng("v", hk[0]), hk[1], hk[2]))
    p = s.pour(it, ss(k) + (62 if k == 0 else 60)); assert p < ss(k + 1)
s.pour(["buffer_load_dwordx4 v[24:27], v9, s[16:19], s45 offen sc1 @F1"], ss(3) + 34)
s.put(ss(7), "s_barrier")
s.pour(["buffer_store_dword v29, v28, s[16:19], s7 offen sc1"], ss(7) + 34)
s.pour(["@vwait B0"] + sum([["v_lshlrev_b32 v%d, 16, v%d" % (120 + 2 * k, RB(0) + k), "v_and_b32 v%d, s38, v%d" % (121 + 2 * k, RB(0) + k)] for k in range(4)], []), ss(3) + 36)
def t_elem(k):
    h = k % 2
    C = 120 + 8 * h; N = 120 + 8 * (1 - h); A = 144; B = RB(k + 1)
    it = [dict(ins="ds_read_b128 %s, v14 offset:%d @t%d" % (rng("v", A), 576 * k, k), gap=8), "@wait t%d" % k, "@vwait B%d" % (k + 1)]
    O = 160
    for r in range(4):
        t = 136 + 2 * (r % 2)
        it += ["v_lshlrev_b32 v%d, 16, v%d" % (t, A + r), "v_and_b32 v%d, s38, v%d" % (t + 1, A + r),
               "v_lshlrev_b32 v%d, 16, v%d" % (N + 2 * r, B + r), "v_and_b32 v%d, s38, v%d" % (N + 2 * r + 1, B + r),
               "v_sub_f32 v%d, v%d, v%d" % (C + 2 * r, C + 2 * r, t), "v_sub_f32 v%d, v%d, v%d" % (C + 2 * r + 1, C + 2 * r + 1, t + 1),
               "v_sub_f32 v%d, v%d, v%d" % (t, N + 2 * r, t), "v_sub_f32 v%d, v%d, v%d" % (t + 1, N + 2 * r + 1, t + 1),
               "v_cvt_pk_bf16_f32 v%d, v%d, v%d" % (O + r, C + 2 * r, C + 2 * r + 1), "v_cvt_pk_bf16_f32 v%d, v%d, v%d" % (O + 4 + r, t, t + 1)]
    for q in range(2):
        it.append("ds_write_b64 v12, %s offset:%d" % (rng("v", O + 2 * q, 2), ARR + 576 * k + 8 * q))
        it.append("ds_write_b64 v12, %s offset:%d" % (rng("v", O + 4 + 2 * q, 2), 576 * k + 8 * q))
    return it
for k in range(12):
    p = s.pour(t_elem(k), ss(k + 4) + 2); assert p < ss(k + 5), (k, p - ss(k + 4))
p = s.pour(["@vwait F1"] + flag_check("L_sl1", 45), ss(5) + 36); assert p < ss(6)
s.put(ss(16) + 30, "s_waitcnt lgkmcnt(0)"); s.put(ss(16) + 30, "s_barrier")
s.pour(["buffer_load_dwordx4 v[24:27], v9, s[16:19], s46 offen sc1 @F2"], ss(13) + 34)
p = s.pour(["@vwait F2"] + flag_check("L_sl2", 46), ss(15) + 30); assert p < ss(16)
items = []
order = sorted(range(36), key=lambda t: [x for x in s.touch[acc("A", t)] if x < ss(18)][-1])
for t in order:
    tt = s.touch[acc("A", t)]
    last = [x for x in tt if x < ss(18)][-1]; nxt = [x for x in tt if x >= ss(18)][0]
    for r in range(4):
        items.append(dict(ins="v_accvgpr_read_b32 v%d, a%d" % (112 + 4 * t + r, acc("A", t)[1] + r), rel=last + 9, dl=nxt))
s.pour(items, ss(17))
if flag("early_st"):
    for q in (1, 2, 3, 5, 7, 9): s.put(ss(q), "@stamp")
else: s.put(ss(9), "@stamp")
s.put(ss(21), "@stamp"); s.put(ss(33), "@stamp")
CB = {48: 0, 49: 3, 50: 4, 51: 5, 52: 1, 53: 2}
PORD = [0, 1, 3, 2]
for q, pl in enumerate(PORD): s.pairpass(pl, list(range(48, 54)), CB, q == 0)
hs = lambda pl, cc: s.ss0[(pl, cc)]
s.put(hs(0, 48), "s_waitcnt lgkmcnt(1)")
s.put(hs(0, 48) + 1, xread(FORD[11], 48))
s.put(hs(1, 48), "s_waitcnt lgkmcnt(0)")
s.pour(["s_add_u32 s34, s34, %d" % (3 * 18432), "s_add_u32 s35, s35, %d" % (3 * 18432)] + [dict(ins=x, gap=3) for x in wloads(52, b=1)]
       + ["s_add_u32 s34, s34, 18432", "s_add_u32 s35, s35, 18432"], ss(47) + 2)
s.pour([dict(ins=x, gap=2) for x in wloads(53, b=2)], hs(0, 48) + 2)
s.pour(["s_add_u32 s48, s34, %d" % (8 * 18432), "s_add_u32 s49, s35, %d" % (8 * 18432)], ss(38) + 40)
ex = []
for k in range(3):
    l = wloads(49 + k, (48, 49), b=3 + k)
    l[-1] = l[-1] + "|s_add_u32 s48, s48, 18432|s_add_u32 s49, s49, 18432"
    ex += l
EXS = [38, 39, 40, 41, 42, 43, 44, 45, 46, 47]
for q, sg in enumerate(EXS):
    it = []
    for x in ex[3 * q:3 * q + 3]:
        parts = x.split("|")
        it.append(dict(ins=parts[0], gap=3)); it += parts[1:]
    p = s.pour(it, ss(sg) + 42); assert p < ss(sg + 1) + 3
s.pour(["s_mul_i32 s46, s28, 12288", "s_add_u32 s46, s46, %d" % U0, "v_add_u32 v14, s46, v9", "s_xor_b32 s47, s28, 2",
        "s_mul_i32 s47, s47, 12288", "s_add_u32 s46, s47, %d" % U0, "s_add_u32 s47, s47, %d" % WS_WO, "v_add_u32 v15, s46, v9"], ss(33) + 36)
s.put(ss(35), "s_barrier")
def wr(r, i, reg):
    t = ROUNDS[r][i]; a = acc("A", t)
    return [dict(ins="ds_write_b64 v%d, %s offset:%d" % (reg, rng("a", a[1] + 2 * h, 2), 1024 * i + 8 * h), rd=a) for h in range(2)]
s.pour([x for i in range(12) for x in wr(0, (i + 8) % 12, 14)], ss(36))
RS = {1: 37, 2: 39, 3: 41}
for r in range(1, 4):
    sg = RS[r]
    s.put(ss(sg), "s_waitcnt lgkmcnt(0)"); s.put(ss(sg), "s_barrier")
    reg = 15 if r % 2 == 1 else 14
    items = []
    def rd(gq):
        for i in range(2):
            items.append("ds_read_b128 %s, v%d offset:%d @x%d_%d" % (rng("v", 16 + 8 * (gq % 2) + 4 * i), reg, 1024 * (2 * gq + i), r, gq))
    rd(0); rd(1)
    items[-1] = dict(ins=items[-1], gap=6)
    for gq in range(6):
        items.append("@wait x%d_%d" % (r, gq))
        for i in range(2):
            t = ROUNDS[r - 1][2 * gq + i]
            for k in range(4):
                items.append(dict(ins="v_add_f32 v%d, v%d, v%d" % (112 + 4 * t + k, 112 + 4 * t + k, 16 + 8 * (gq % 2) + 4 * i + k), wr=acc("V", t)))
        if gq + 2 < 6: rd(gq + 2)
        if r < 3:
            for i in range(2): items += wr(r, 2 * gq + i, reg)
    p = s.pour(items, ss(sg) + 2)
    assert p < ss(sg + 2) - 8, (r, p - ss(sg))
for sg in range(43, 46):
    it = []
    for i in range(4):
        it += [dict(ins="s_mov_b32 m0, s46", gap=1), "buffer_load_dwordx4 v9, s[16:19], s47 offen sc1 lds", "s_add_u32 s46, s46, 1024", dict(ins="s_add_u32 s47, s47, 1024", gap=2)]
    s.pour(it, ss(sg) + 34)
pre = ["s_mov_b32 s50, 0x4038aa3b", "s_mov_b32 s51, 0x4038aa3b", "s_mov_b32 s52, 0xbfb8aa3b", "s_mov_b32 s53, 0xbfb8aa3b",
       "s_mov_b32 s54, 1.0", "s_mov_b32 s55, 1.0", "s_mov_b32 s56, -2.0", "s_mov_b32 s57, -2.0", "v_mov_b32 v28, 1.0", "v_mov_b32 v29, 1.0",
       "s_mul_i32 s47, s2, %d" % ZS, "s_add_u32 s47, s47, %d" % WS_Z, "s_mul_i32 s3, s28, 7168", "s_add_u32 s45, s47, s3", "s_add_u32 s44, s45, 4096",
       "s_add_u32 s48, s45, %d" % ZS, "s_xor_b32 s3, s28, 1", "s_mul_i32 s3, s3, 7168", "s_add_u32 s49, s47, s3", "s_add_u32 s49, s49, %d" % (ZS + 4096),
       "v_lshlrev_b32 v12, 3, v0", "s_lshl_b32 s3, s28, 11", "v_add_u32 v14, s3, v9", "s_xor_b32 s3, s3, 2048", "v_add_u32 v15, s3, v9",
       "v_mov_b32 v27, s62",
       "s_lshl_b32 s3, s39, 1", "s_add_u32 s3, s3, s29", "s_lshl_b32 s3, s3, 10", "s_add_u32 s3, s3, %d" % U0,
       "v_add_u32 v16, s3, v9", "s_xor_b32 s3, s3, 1024", "v_add_u32 v17, s3, v9",
       "s_xor_b32 s3, s3, 2048", "v_add_u32 v26, s3, v9", "s_xor_b32 s3, s3, 1024", "v_add_u32 v18, s3, v9",
       "s_mul_i32 s3, s39, 4608", "s_add_u32 s3, s3, %d" % (U0 + 36864), "v_add_u32 v19, s3, v12",
       "v_and_b32 v20, 15, v0", "v_lshrrev_b32 v21, 4, v0", "v_mul_u32_u24 v22, 288, v20", "s_mul_i32 s3, s28, 9216", "s_add_u32 s3, s3, %d" % D1,
       "v_add_u32 v22, s3, v22", "v_lshl_add_u32 v24, v21, 4, v22", "v_lshl_add_u32 v25, v21, 3, v22", "v_add_u32 v23, s3, v9",
       "s_mul_i32 s3, s32, 16000", "s_add_u32 s3, s3, s31", "s_add_u32 s3, s3, 130",
       "s_lshl_b32 s4, s29, 6", "s_add_u32 s3, s3, s4", "s_lshl_b32 s4, s30, 1", "s_sub_u32 s3, s3, s4", "s_mul_i32 s63, s3, 288",
       "s_mov_b32 s36, 0x4000"]
i12 = pre.index("v_lshlrev_b32 v12, 3, v0")
i16 = pre.index("v_mov_b32 v27, s62") + 1
i19 = pre.index("v_add_u32 v19, s3, v12") + 1
p = s.pour([pre[i12]] + pre[i16:i19], ss(46) + 50); assert p < hs(0, 48)
p = s.pour(pre[:i16] + pre[i19:], hs(0, 49) + 4); assert p < hs(0, 53)
s.put(hs(0, 48), "s_barrier")
FREE = [40, 44, 88, 92, 136, 140, 232, 236, 240, 244, 248, 252] + [144 + 4 * i for i in range(6)]
WOR = {}
for i in range(18): WOR[(i % 9, i // 9)] = FREE[i]
for i in range(18): WOR[(i % 9, 2 + i // 9)] = 4 * i if i < 10 else 48 + 4 * (i - 10)
WO8 = lambda no: 96 + 2 * no
def wo_read(no, k): return "ds_read_b128 %s, v%d offset:%d" % (rng("a", WOR[(no, k)]), [16, 17, 18, 26][k], no * 4096)
s.pour([dict(ins=wo_read(i % 9, i // 9), gap=3) for i in range(12)], hs(0, 51) + 2)
WOL = [wo_read(i % 9, i // 9) for i in range(12, 18)]
def act_np(R, z):
    return ["v_mul_f32 v%d, s50, v%d" % (R, R), "v_mul_f32 v%d, s50, v%d" % (R + 1, R + 1), "v_mul_f32 v%d, s52, v%d" % (R + 2, R + 2), "v_mul_f32 v%d, s52, v%d" % (R + 3, R + 3)] \
        + ["v_exp_f32 v%d, v%d" % (R + k, R + k) for k in range(4)] + ["v_add_f32 v%d, 1.0, v%d" % (R + k, R + k) for k in range(4)] \
        + ["v_rcp_f32 v%d, v%d" % (R + k, R + k) for k in range(4)] \
        + ["v_fma_f32 v%d, v%d, -2.0, 1.0" % (R + k, R + k) for k in range(2)] + ["v_mul_f32 v%d, v%d, v%d" % (R + k, R + k, R + 2 + k) for k in range(2)] \
        + ["v_cvt_pk_bf16_f32 v%d, v%d, v%d" % (z, R, R + 1)]
PT = []
TR = lambda t: 112 + 4 * t
def gst(R, sreg, off): return ["v_mov_b32 v%d, s62" % (R + 3), "buffer_store_dwordx4 %s, v9, s[16:19], s%d offen offset:%d sc1" % (rng("v", R), sreg, off)]
for pr in range(2):
    n0 = 2 * pr; sreg = 45 if pr == 0 else 44
    for q in range(2):
        for ml in range(3):
            PT.append((ml * 8 + n0 + q, TR(n0 + q) + ml, gst(TR(n0 + q), sreg, 1024 * q) if ml == 2 else None))
    PT.append((24 + n0, TR(24 + n0), None))
    PT.append((24 + n0 + 1, TR(24 + n0) + 1, gst(TR(24 + n0), sreg, 2048) if pr == 1 else None))
    if pr == 0:
        PT.append((32, TR(24) + 2, gst(TR(24), sreg, 2048)))
        PT.append((33, TR(33), ["v_mov_b32 v%d, s62" % (TR(33) + 1), "buffer_store_dwordx2 %s, v12, s[16:19], s45 offen offset:3072 sc1" % rng("v", TR(33), 2)]))
for u in range(2):
    for ml in range(4):
        PT.append((ml * 8 + 6 + u, 112 + 4 * (6 + u) + ml, ["ds_write_b128 v14, %s offset:%d" % (rng("v", 112 + 4 * (6 + u)), 1024 * u)] if ml == 3 else None))
NSH = opt("nsh", 17)
it = []
for t, z, st in PT[:NSH]:
    a = act_np(112 + 4 * t, z)
    a[0] = dict(ins=a[0], rel=s.touch[acc("V", t)][-1] + 9)
    it += a
    if st: it += st
p = s.pour(it, hs(1, 48))
p2 = s.pour(WOL, hs(3, 48) + 4)
sys.stderr.write("shadow activation ends at slot %d of %d\n" % (p - hs(1, 48), len(s.mf) - hs(1, 48)))
if not flag("nopf2"):
    s.pour(["s_getpc_b64 s[4:5]\nL_pc2:", "s_lshr_b32 s3, s100, 3", "s_lshl_b32 s3, s3, 2", "s_add_u32 s3, s3, s28", "s_lshl_b32 s3, s3, 8",
            "v_and_b32 v4, 3, v0", "v_lshlrev_b32 v4, 6, v4", "v_add_u32 v4, s3, v4", "v_min_u32 v4, L_codeend-L_pc2-4, v4",
            "global_load_dword v5, v4, s[4:5]"], ss(34) + 40)
s.put(ss(43), "@stamp")
s.emit()
stamp()
def act_tile(R, z):
    return ["v_pk_mul_f32 v[%d:%d], v[%d:%d], s[50:51]" % (R, R + 1, R, R + 1),
        "v_pk_mul_f32 v[%d:%d], v[%d:%d], s[52:53]" % (R + 2, R + 3, R + 2, R + 3),
        "v_exp_f32 v%d, v%d" % (R, R), "v_exp_f32 v%d, v%d" % (R + 1, R + 1),
        "v_exp_f32 v%d, v%d" % (R + 2, R + 2), "v_exp_f32 v%d, v%d" % (R + 3, R + 3),
        "v_pk_add_f32 v[%d:%d], v[%d:%d], s[54:55]" % (R, R + 1, R, R + 1),
        "v_rcp_f32 v%d, v%d" % (R, R),
        "v_pk_add_f32 v[%d:%d], v[%d:%d], s[54:55]" % (R + 2, R + 3, R + 2, R + 3),
        "v_rcp_f32 v%d, v%d" % (R + 1, R + 1),
        "v_rcp_f32 v%d, v%d" % (R + 2, R + 2), "v_rcp_f32 v%d, v%d" % (R + 3, R + 3),
        "v_pk_fma_f32 v[%d:%d], v[%d:%d], s[56:57], v[28:29]" % (R, R + 1, R, R + 1),
        "v_pk_mul_f32 v[%d:%d], v[%d:%d], v[%d:%d]" % (R, R + 1, R, R + 1, R + 2, R + 3),
        "v_cvt_pk_bf16_f32 v%d, v%d, v%d" % (z, R, R + 1)]
stamp("e")
c("activation: remaining partner-destined tiles")
for t, z, st in PT[NSH:]:
    E(*act_tile(112 + 4 * t, z))
    if st: E(*st)
E("s_waitcnt lgkmcnt(0)", "s_barrier")
E("s_cmp_eq_u32 s33, 125", "s_cbranch_scc1 L_end")
stamp()
stamp("e")
for u in range(2): e("ds_read_b128 %s, v15 offset:%d" % (rng("v", 72 + 4 * u), 1024 * u))
c("own tiles (local 4,5)")
LA = ["buffer_load_dwordx4 v[80:83], v9, s[16:19], s48 offen sc1", "buffer_load_dwordx4 v[84:87], v9, s[16:19], s48 offen offset:1024 sc1",
      "buffer_load_dwordx4 v[88:91], v9, s[16:19], s48 offen offset:2048 sc1", "buffer_load_dwordx2 v[92:93], v12, s[16:19], s48 offen offset:3072 sc1"]
LB = ["buffer_load_dwordx4 %s, v9, s[16:19], s49 offen offset:%d sc1" % (rng("v", 96 + 4 * i), 1024 * i) for i in range(3)]
LAAT = opt("laat", 0); LBAT = opt("lbat", 5)
tiles = [(ml * 8 + 4, 48 + ml) for ml in range(4)] + [(34, 66)] + [(ml * 8 + 5, 52 + ml) for ml in range(4)] + [(35, 68)]
for i, (t, z) in enumerate(tiles):
    if i == LAAT: E(*LA)
    if i == LBAT: E(*LB)
    E(*act_tile(112 + 4 * t, z))
stamp("e")
c("partner stores of this wave must have left their registers before GEMM2 overwrites them")
e("s_waitcnt vmcnt(7) lgkmcnt(0)")
a2 = lambda u, no: 112 + (u * 9 + no) * 4
def tagchk(name, tags, loads, nafter):
    it = []
    E("s_waitcnt vmcnt(%d)" % nafter)
    lab(name)
    E("v_min3_u32 v4, v%d, v%d, v%d" % tuple(tags[:3]), "v_max3_u32 v5, v%d, v%d, v%d" % tuple(tags[:3]))
    if len(tags) > 3: E("v_min_u32 v4, v4, v%d" % tags[3], "v_max_u32 v5, v5, v%d" % tags[3])
    E("v_xor_b32 v4, s62, v4", "v_xor_b32 v5, s62, v5", "v_or_b32 v4, v4, v5", "v_cmp_ne_u32 vcc, 0, v4", "s_nop 1", "s_cmp_lg_u64 vcc, 0",
      "s_cbranch_scc1 %s_r" % name)
    lab(name + "_ok")
    slow.extend([name + "_r:", "s_sub_u32 s36, s36, 1", "s_cmp_eq_u32 s36, 0", "s_cbranch_scc1 %s_ok" % name] + loads + ["s_waitcnt vmcnt(0)", "s_branch " + name])
g = Seg("g2a")
for k in range(2):
    for no in range(9):
        for u in range(2):
            z = (48 + 4 * u) if k == 0 else 72 + 4 * u
            d = rng("v", a2(u, no))
            g.slot("v_mfma_f32_16x16x32_bf16 %s, %s, %s, %s" % (d, rng("a", WOR[(no, k)]), rng("v", z), "0" if k == 0 else d), ("v", a2(u, no)))
rd = []
for no in range(9):
    rd += [wo_read(no, 2), wo_read(no, 3), "ds_read_b64 %s, v19 offset:%d" % (rng("a", WO8(no), 2), no * 512)]
g.pour([dict(ins=x, gap=1) for x in rd], 0)
oa = ["v_mul_u32_u24 v4, 1821, v0"]
for i in range(9):
    oa += ["v_lshrrev_b32 v5, 16, v4", "v_mad_u32_u24 v%d, v5, s42, v9" % (32 + i)]
    if i < 8: oa.append("v_add_u32 v4, %d, v4" % (64 * 1821))
g.pour(oa, 0)
g.emit()
stamp("e")
tagchk("L_ca", [83, 87, 91, 93], LA, 3)
E("v_mov_b32 v83, v88", "v_mov_b32 v87, v89", "v_mov_b32 v67, v90", "v_mov_b32 v69, v92", "s_waitcnt lgkmcnt(0)", "s_nop 0")
for u in range(2):
    for no in range(9):
        d = rng("v", a2(u, no))
        e("v_mfma_f32_16x16x16_bf16 %s, %s, %s, %s" % (d, rng("a", WO8(no), 2), rng("v", 66 + 2 * u, 2), d))
for u in range(2):
    for no in range(9):
        d = rng("v", a2(u, no))
        e("v_mfma_f32_16x16x32_bf16 %s, %s, %s, %s" % (d, rng("a", WOR[(no, 2)]), rng("v", 80 + 4 * u), d))
stamp("e")
tagchk("L_cb", [99, 103, 107], LB, 0)
E("v_mov_b32 v99, v104", "v_mov_b32 v103, v105", "s_nop 1")
g = Seg("g2b")
items = []
for u in range(2):
    so = "0" if u == 0 else "s63"
    for P in range(5):
        nos = [2 * P, 2 * P + 1] if P < 4 else [8]
        for no in nos:
            d = rng("v", a2(u, no))
            g.slot("v_mfma_f32_16x16x32_bf16 %s, %s, %s, %s" % (d, rng("a", WOR[(no, 3)]), rng("v", 96 + 4 * u), d), ("v", a2(u, no)))
        o = 184 + (u * 5 + P) * 4
        rel = len(g.mf) + 7
        grp = []
        for ee, no in enumerate(nos):
            d = a2(u, no)
            grp.append(dict(ins="v_cvt_pk_bf16_f32 v%d, v%d, v%d" % (o + 2 * ee, d, d + 1), rel=rel))
            grp.append("v_cvt_pk_bf16_f32 v%d, v%d, v%d" % (o + 2 * ee + 1, d + 2, d + 3))
        if P < 4: grp.append("ds_write_b128 v24, %s offset:%d" % (rng("v", o), 4608 * u + 64 * P))
        else: grp.append("ds_write_b64 v25, %s offset:%d" % (rng("v", o, 2), 4608 * u + 256))
        items.append(grp)
NG = 3
g.pour(sum(items[:NG], []), 0)
g.emit()
NT = "" if flag("nont") else " nt"
def ost(i):
    e("s_add_u32 s3, s63, %d" % (4096 * (i // 4))) if i % 4 == 0 else None
    e("buffer_store_dwordx4 %s, v%d, s[24:27], s3 offen offset:%d%s" % (rng("v", 112 + 4 * i), 32 + i, 1024 * (i % 4), NT))
flat(sum(items[NG:5], []))
for i in range(4): e("ds_read_b128 %s, v23 offset:%d" % (rng("v", 112 + 4 * i), 1024 * i))
flat(sum(items[5:8], []))
e("s_waitcnt lgkmcnt(3)")
for i in range(4): ost(i)
flat(sum(items[8:], []))
for i in range(4, 9): e("ds_read_b128 %s, v23 offset:%d" % (rng("v", 112 + 4 * i), 1024 * i))
for i in range(4, 9):
    e("s_waitcnt lgkmcnt(%d)" % (8 - i))
    ost(i)
if STAMPS:
    stamp("e")
    e("s_waitcnt vmcnt(0)")
    stamp("m"); stamp("e")
    stamp_flush(nst[0])
    sys.stderr.write("stamps %d\n" % nst[0])
lab("L_end")
e("s_endpgm")
E(*slow)
lab("L_codeend")
out.append(""".section .rodata,"a"
.p2align 6
.amdhsa_kernel %s_kernel
  .amdhsa_next_free_vgpr 512
  .amdhsa_next_free_sgpr 102
  .amdhsa_accum_offset 256
  .amdhsa_group_segment_fixed_size 0
  .amdhsa_kernarg_size 48
  .amdhsa_user_sgpr_count 2
  .amdhsa_user_sgpr_kernarg_segment_ptr 1
  .amdhsa_system_sgpr_workgroup_id_x 1
.end_amdhsa_kernel""" % NAME)
lines = "\n".join(out).split("\n")
errs = hz.check([l for l in lines if "\\" not in l])
for x in errs[:40]: sys.stderr.write(x + "\n")
mre = re.compile(r"^v_mfma_f32_16x16x32_bf16 (\S+), (\S+), (\S+), (\S+)$")
def shrink(l):
    m = mre.match(l)
    if m and m.group(1) == m.group(4) and "\\" not in l: return "M %s,%s,%s" % (m.group(1), m.group(2), m.group(3))
    return l
txt = "\n".join(shrink(l) for l in lines) + "\n"
sys.stderr.write("%d hazards, %d bytes\n" % (len(errs), len(txt)))
args = [a for a in sys.argv[1:] if not a.startswith("--")]
open(args[0] if args else "cdna_kernels/%s.s" % NAME, "w").write(txt)
```

```python
import sys, re
import hz

NAME = "standalone__autoregressive_conv_wavenet__speech"
def flag(n): return ("--" + n) in sys.argv
def opt(name, default):
    return int(([a.split("=")[1] for a in sys.argv if a.startswith("--%s=" % name)] or [str(default)])[0])
STAMPS = flag("stamps"); PST = flag("pst")
WS_WO = 0x400000; WS_WO8 = WS_WO + 36864
WS_F1 = 0x420000; WS_F2 = 0x428000; WS_F1P = 0x429000; WS_F3 = 0x430000
ZS = 28672
WS_Z = 0x440000; WS_END = WS_Z + 252 * ZS
WS_ST = 0x1000000
ARR = 49152; D1 = 12288; D0 = D1 + ARR; U0 = D0 + ARR
BIG = 0x7f000000
HDR = """; Kernarg layout for this problem (48 bytes, ptrs only, base s[0:1]):
; @launch grid=(256,1,1) block=(256,1,1) lds=163840
"""
out = []
def e(s): out.extend(s.split("\n"))
def E(*l):
    for s in l: e(s)
def lab(s): out.append(s + ":")
def c(s): out.append("; " + s)

nst = [0]
def stamp_ins():
    r = 64 + 4 * nst[0]; nst[0] += 1
    return "s_memtime s[%d:%d]\ns_memrealtime s[%d:%d]\ns_waitcnt lgkmcnt(0)" % (r, r + 1, r + 2, r + 3)
EST = flag("est")
def stamp_on(kind):
    if EST: return STAMPS and kind == "e"
    if kind == "e": return False
    return STAMPS and (kind == "a" or (kind == "p") == PST)
def stamp(kind="m"):
    if stamp_on(kind) and nst[0] < 9: e(stamp_ins())
def stamp_flush(n):
    E("s_lshl_b32 s3, s2, 2", "s_add_u32 s3, s3, s28", "s_mul_i32 s3, s3, %d" % (n * 16), "s_add_u32 s3, s3, %d" % WS_ST,
      "s_add_u32 s4, s60, s3", "s_addc_u32 s5, s61, 0", "v_mov_b32 v4, 0")
    for i in range(n):
        for k in range(4): e("v_mov_b32 v%d, s%d" % (8 + k, 64 + 4 * i + k))
        e("global_store_dwordx4 v4, v[8:11], s[4:5] offset:%d" % (16 * i)); e("s_nop 1")

def rng(k, r, n=4): return "%s[%d:%d]" % (k, r, r + n - 1)
def wbuf(b, ab, i):
    off = 20 * ab + 4 * i
    if b >= 3: return ("a", 48 * (b - 3) + off)
    return ("v", 32 + off) if b == 0 else ("v", 72 + off) if b == 1 else ("a", 192 + off)
def gf(b): return 144 + 4 * b
N8 = [0, 1, 4, 5]
col = lambda n: [ml * 8 + n for ml in range(4)]
ROUNDS = [col(4) + col(6) + col(0), col(5) + col(7) + col(1), [34, 35] + col(3) + [32, 33] + col(2)]
APOS = {t: i for i, t in enumerate(sum(ROUNDS, []))}
def acc(s, t): return ("a", 4 * APOS[t]) if s == "A" else ("v", 112 + 4 * t)
def xread(b, sg):
    pl, k = divmod(b, 3)
    jl, cc0 = divmod(4 * (sg % 18), 18)
    reg = (3 if pl % 2 == 0 else 10) if cc0 != 16 else (13 if pl % 2 == 0 else 11)
    return "ds_read_b128 %s, v%d offset:%d" % (rng("a", gf(b)), reg, (2 * pl + k) * 4608 + (3 - jl) * 576 + cc0 * 16)
SNAKE = not flag("nosnake")
def bursts():
    r = []
    for pl in range(4):
        e_, o_ = 2 * pl, 2 * pl + 1
        if not SNAKE: r += [(3 * pl, [(1, e_, 0)]), (3 * pl + 1, [(0, e_, 0), (1, o_, 0)]), (3 * pl + 2, [(0, o_, 0)])]
        elif pl % 2 == 0: r += [(3 * pl, [(1, e_, 0)]), (3 * pl + 1, [(1, o_, 1), (0, e_, 0)]), (3 * pl + 2, [(0, o_, 1)])]
        else: r += [(3 * pl + 2, [(0, o_, 0)]), (3 * pl + 1, [(0, e_, 1), (1, o_, 0)]), (3 * pl, [(1, e_, 1)])]
    return r
BUR = bursts()
FORD = [b for b, _ in BUR]

def cost_of(ins):
    if "\n" in ins: return sum(cost_of(x) for x in ins.split("\n"))
    if ins.startswith("@") or ins.startswith("s_waitcnt") or ins.startswith("s_barrier") or ins.endswith(":"): return 0
    if ins.startswith("ds_write_b128") or ins.startswith("buffer_store_dwordx4"): return 5
    if ins.startswith("ds_write_b64"): return 3
    if ins.startswith("ds_write") or ins.startswith("buffer_store"): return 2
    if ins.split()[0] in hz.TRANS: return 2
    return 1
def is_valu(ins): return ins.startswith("v_")

def wloads(sg, sregs=(34, 35), b=None):
    if b is None: b = sg % 3
    r = []
    for ab in (1, 0):
        for i in range(5):
            w = wbuf(b, ab, i)
            tag = " @W%d" % sg if (ab, i) == (0, 4) else ""
            if i < 4: r.append("buffer_load_dwordx4 %s, v1, s[16:19], s%d offen offset:%d sc1%s" % (rng(*w), sregs[ab], 1024 * i, tag))
            else: r.append("buffer_load_dwordx4 %s, v2, s[16:19], s%d offen sc1%s" % (rng(*w), sregs[ab], tag))
    return r

class Seg:
    CAP = 2
    def __init__(s, name, vtags=None):
        s.name = name; s.mf = []; s.fill = []; s.used = []; s.burst = {}; s.touch = {}; s.ss0 = {}; s.seq = 0
        s.vtags = dict(vtags or {})
    def slot(s, ins, a):
        s.touch.setdefault(a, []).append(len(s.mf))
        s.mf.append(ins); s.fill.append([]); s.used.append(0)
    def put(s, sl, ins, seq=-1):
        s.fill[sl].append((ins, seq)); s.used[sl] += cost_of(ins)
    def superstep(s, sg, aset, vm=None, xswitch=None, wload=True, xnext=True, wstart=3, wgap=3):
        b = sg % 3
        base = len(s.mf); s.ss0[sg] = base
        for bi, (fr, work) in enumerate(BUR):
            s.burst[(sg, bi)] = len(s.mf)
            x = rng("a", gf(fr))
            for ab, n, desc in work:
                tl = [(ml, ml * 8 + n) for ml in range(4)]
                if n in N8: tl.append((4, 32 + N8.index(n)))
                if desc: tl.reverse()
                for wi, t in tl:
                    a = acc(aset, t); w = wbuf(b, ab, wi)
                    s.slot("v_mfma_f32_16x16x32_bf16 %s, %s, %s, %s" % (rng(*a), rng(*w), x, rng(*a)), a)
        assert len(s.mf) - base == 72
        s.ss0[sg + 1] = len(s.mf)
        s.put(base, "@vwait W%d" % sg if vm is None else "s_waitcnt vmcnt(%d)" % vm)
        s.put(base, "s_waitcnt lgkmcnt(1)")
        s.put(base + 1, xread(FORD[11], sg))
        s.put(s.burst[(sg, 6)], "s_waitcnt lgkmcnt(2)")
        if xswitch:
            s.put(base + 2, "v_add_u32 v3, %s, v3" % xswitch); s.put(base + 2, "v_add_u32 v10, %s, v10" % xswitch)
            s.put(base + 4, "v_add_u32 v13, %s, v13" % xswitch); s.put(base + 4, "v_add_u32 v11, %s, v11" % xswitch)
        for bi in range(11): s.put(s.burst[(sg, bi + 1)] + 1, xread(FORD[bi], sg + 1))
        if wload:
            it = [dict(ins=x, gap=wgap) for x in wloads(sg + 2)] + ["s_add_u32 s34, s34, 18432", "s_add_u32 s35, s35, 18432"]
            s.pour(it, base + wstart)
    def pairpass(s, pl, cs, bufs, firstpass):
        bl = BUR[3 * pl:3 * pl + 3]
        pend = None
        for cc in cs:
            s.ss0[(pl, cc)] = len(s.mf)
            for fr, work in bl:
                b0 = len(s.mf)
                x = rng("a", gf(fr))
                for ab, n, desc in work:
                    tl = [(ml, ml * 8 + n) for ml in range(4)]
                    if n in N8: tl.append((4, 32 + N8.index(n)))
                    if desc: tl.reverse()
                    for wi, t in tl:
                        a = acc("V", t); w = wbuf(bufs[cc], ab, wi)
                        s.slot("v_mfma_f32_16x16x32_bf16 %s, %s, %s, %s" % (rng(*a), rng(*w), x, rng(*a)), a)
                if firstpass and fr == bl[0][0]: s.put(b0, "@vwait W%d" % cc)
                if cc != cs[0]: s.put(b0, "@wait g%d_%d" % (fr, cc))
                if pend: s.put(b0 + 1, pend)
                pend = xread(fr, cc + 1) + " @g%d_%d" % (fr, cc + 1) if cc != cs[-1] else None
    def pour(s, items, start):
        s.seq += 1; seq = s.seq; p = start
        for it in items:
            if isinstance(it, str): it = dict(ins=it)
            ins = it["ins"]; cost = cost_of(ins)
            p = max(p, it.get("rel", 0))
            while True:
                assert p < len(s.mf), "pour overflow: " + ins
                ok = s.used[p] + cost <= s.CAP or (s.used[p] == 0)
                if ok and not is_valu(ins) and any(is_valu(x) and q == seq for x, q in s.fill[p]): ok = False
                a = it.get("rd") or it.get("wr")
                if ok and a:
                    for t in s.touch.get(a, []):
                        if t < p <= t + 8: ok = False
                        if it.get("wr") and t - 2 < p <= t: ok = False
                if ok: break
                p += 1
            assert p <= it.get("dl", 1 << 30), "deadline miss: %s %d" % (ins, p)
            s.put(p, ins, seq)
            p += it.get("gap", 0)
        return p
    def emit(s):
        lin = []
        for m, f in zip(s.mf, s.fill):
            lin += [x for x, q in f if not is_valu(x)] + [x for x, q in f if is_valu(x)]
            lin.append(m)
        cnt = 0; tags = {}; vc = 0; vt = dict(s.vtags)
        for x in lin:
            if x.startswith("@wait "):
                e("s_waitcnt lgkmcnt(%d)" % min(cnt - tags[x[6:]], 15)); continue
            if x.startswith("@vwait "):
                n = min(vc - vt[x[7:]], 63); assert n >= 0
                e("s_waitcnt vmcnt(%d)" % n); continue
            if x == "@stamp":
                stamp("m"); continue
            tag = None
            if " @" in x: x, tag = x.split(" @")
            if x.startswith("ds_"): cnt += 1
            if x.startswith("buffer_") or x.startswith("global_"): vc += 1
            if tag:
                if x.startswith("ds_"): tags[tag] = cnt
                else: vt[tag] = vc
            e(x)
        over = sum(max(0, u - s.CAP) for u in s.used)
        sys.stderr.write("seg %s: %d mfma, overflow units %d\n" % (s.name, len(s.mf), over))
        return {k: v - vc for k, v in vt.items()}
def flat(items):
    for it in items:
        if isinstance(it, dict):
            e(it["ins"].split(" @")[0])
            if it.get("gap"): e("s_nop 0")
        else: e(it.split(" @")[0])

EARLY = opt("early", 0); MID = opt("mid", 0)
out.append(HDR + '.amdgcn_target "amdgcn-amd-amdhsa--gfx950"\n.text')
out.append(".macro M d, a, b\nv_mfma_f32_16x16x32_bf16 \\d, \\a, \\b, \\d\n.endm")
out.append(".globl %s_kernel\n.p2align 8\n.type %s_kernel,@function" % (NAME, NAME))
lab(NAME + "_kernel")
E("s_cmp_ge_u32 s2, 256", "s_cbranch_scc1 L_end")
c("XCD-friendly remap: XCD k=id&7 gets a contiguous range of 32/31/31/32 logical workgroups per batch")
E("s_mov_b32 s100, s2", "s_and_b32 s3, s2, 3", "s_lshr_b32 s4, s2, 3", "s_lshl_b32 s5, s3, 5", "s_sub_u32 s6, s3, 1", "s_max_i32 s7, s6, 0",
  "s_sub_u32 s5, s5, s7", "s_cmp_lt_u32 s6, 2", "s_cselect_b32 s6, 31, 32", "s_cmp_ge_u32 s4, s6", "s_cbranch_scc1 L_end",
  "s_add_u32 s5, s5, s4", "s_bitcmp1_b32 s2, 2", "s_cselect_b32 s2, 126, 0", "s_add_u32 s2, s2, s5")
stamp("a")
E("s_load_dwordx8 s[4:11], s[0:1], 0", "s_load_dwordx4 s[56:59], s[0:1], 32", "s_memrealtime s[54:55]",
  "v_lshrrev_b32 v1, 6, v0", "v_mov_b32 v19, v0", "v_and_b32 v0, 63, v0", "v_readfirstlane_b32 s28, v1", "v_lshlrev_b32 v9, 4, v0")
c("weight-production unit: gw = 4*phys + wave = ((ql*4 + kh*2 + AB)*3 + third)")
PID = "s2"
E("s_lshl_b32 s63, %s, 2" % PID, "s_add_u32 s63, s63, s28", "s_mul_i32 s3, s63, 21846", "s_lshr_b32 s48, s3, 16",
  "s_mul_i32 s3, s48, 3", "s_sub_u32 s49, s63, s3", "s_lshr_b32 s51, s48, 2", "s_mul_i32 s3, s51, 3641", "s_lshr_b32 s50, s3, 16",
  "s_mul_i32 s3, s50, 18", "s_sub_u32 s51, s51, s3", "s_and_b32 s3, s48, 2", "s_lshl_b32 s3, s3, 1", "s_add_u32 s50, s50, s3",
  "s_and_b32 s3, s48, 1", "s_lshl_b32 s3, s3, 3", "s_add_u32 s50, s50, s3",
  "s_mul_i32 s52, s50, 165888", "s_mul_i32 s3, s51, 4608", "s_add_u32 s52, s52, s3", "s_add_u32 s53, s52, 82944",
  "s_mul_i32 s3, s49, 6", "v_lshrrev_b32 v20, 3, v0", "v_add_u32 v20, s3, v20", "v_and_b32 v21, 6, v0",
  "v_lshl_add_u32 v21, v20, 3, v21", "v_and_b32 v22, 1, v0", "v_mul_u32_u24 v22, 144, v22", "v_add_lshl_u32 v24, v21, v22, 1")
c("tile decode")
E("s_cmp_ge_u32 s2, 126", "s_cselect_b32 s32, 1, 0", "s_mul_i32 s3, s32, 126", "s_sub_u32 s33, s2, s3", "s_and_b32 s39, s33, 1",
  "s_lshl_b32 s31, s33, 7", "s_sub_u32 s31, s31, 128", "s_and_b32 s29, s28, 1", "s_lshr_b32 s30, s28, 1",
  "s_sub_u32 s3, s31, 60", "s_mul_i32 s3, s3, 288",
  "v_mul_u32_u24 v112, 1821, v19", "v_lshlrev_b32 v113, 4, v19", "v_add_u32 v113, s3, v113", "s_movk_i32 s42, 576",
  "s_lshl_b32 s40, s28, 10", "s_add_u32 s41, s40, %d" % D0, "s_add_u32 s40, s40, %d" % U0,
  "s_mul_i32 s3, s32, 4608000", "s_mov_b32 s22, 2571264", "s_mov_b32 s23, 0x20000", "s_mov_b32 s14, 4608000", "s_mov_b32 s15, 0x20000",
  "s_mov_b32 s46, 256", "s_mov_b32 s47, 0x20000", "s_mov_b32 s18, %d" % WS_END, "s_mov_b32 s19, 0x20000",
  "v_mov_b32 v30, 0", "v_mov_b32 v216, %d" % BIG, "v_mov_b32 v217, %d" % BIG, "s_waitcnt lgkmcnt(0)")
stamp("p")
E("s_mov_b32 s20, s6", "s_and_b32 s21, s7, 0xffff", "s_add_u32 s12, s4, s3", "s_addc_u32 s13, s5, 0", "s_and_b32 s13, s13, 0xffff",
  "s_mov_b32 s44, s56", "s_and_b32 s45, s57, 0xffff", "s_cmp_lg_u32 s63, 0", "s_cbranch_scc1 L_noep")
c("the first wave publishes a launch-unique tag")
E("s_or_b32 s54, s54, 1", "v_mov_b32 v29, s54", "s_mov_b64 exec, 1", "buffer_store_dword v29, v30, s[44:47], 0 offen sc1", "s_mov_b64 exec, -1")
lab("L_noep")
E("s_cmp_ge_u32 s63, 864", "s_cbranch_scc1 L_wo_ld", "s_mov_b32 exec_hi, 0xffff")
for r in range(8): e("buffer_load_dword v%d, v24, s[20:23], s52 offen offset:%d" % (32 + r, r * 576))
for r in range(8): e("buffer_load_dword v%d, v24, s[20:23], s53 offen offset:%d" % (40 + r, r * 576))
E("s_mov_b64 exec, -1", "s_branch L_ld_done")
lab("L_wo_ld")
c("w_o units: W = gw-864 (<54)")
E("s_mov_b32 s20, s8", "s_and_b32 s21, s9, 0xffff", "s_mov_b32 s22, 41472", "s_sub_u32 s48, s63, 864", "s_lshr_b32 s49, s48, 2",
  "s_sub_u32 s50, s48, 36", "s_cmp_ge_i32 s50, 9", "s_cselect_b32 s51, 1, 0", "s_mul_i32 s3, s51, 9", "s_sub_u32 s52, s50, s3",
  "s_cmp_lt_u32 s48, 36", "s_cselect_b32 s49, s49, s52",
  "v_and_b32 v20, 15, v0", "v_lshrrev_b32 v21, 4, v0", "v_lshrrev_b32 v22, 2, v20", "v_lshlrev_b32 v22, 4, v22", "v_and_b32 v23, 3, v20",
  "v_lshl_add_u32 v22, v23, 1, v22", "s_lshr_b32 s3, s49, 1", "s_lshl_b32 s3, s3, 6", "s_and_b32 s52, s49, 1", "s_lshl_b32 s52, s52, 3",
  "s_add_u32 s3, s3, s52", "v_lshlrev_b32 v23, 1, v20", "s_cmp_eq_u32 s49, 8", "s_cselect_b64 vcc, -1, 0",
  "v_cndmask_b32 v22, v22, v23, vcc", "v_add_u32 v22, s3, v22", "v_mul_u32_u24 v23, 576, v21", "v_add_u32 v24, v22, v23",
  "s_and_b32 s3, s48, 3", "s_lshr_b32 s52, s3, 1", "s_mul_i32 s52, s52, %d" % (72 * 288), "s_and_b32 s3, s3, 1",
  "s_mul_i32 s3, s3, %d" % (32 * 288), "s_add_u32 s52, s52, s3", "s_mul_i32 s53, s51, %d" % (72 * 288), "s_add_u32 s53, s53, %d" % (64 * 288),
  "s_cmp_eq_u32 s51, 0", "s_mov_b32 s3, %d" % (-72 * 288), "s_cselect_b32 s54, %d, s3" % (72 * 288),
  "s_cmp_lt_u32 s48, 36", "s_cselect_b32 s52, s52, s53", "s_cselect_b32 s54, %d, s54" % (8 * 288))
for i in range(4):
    e("buffer_load_ushort v%d, v24, s[20:23], s52 offen" % (32 + i))
    e("buffer_load_ushort v%d, v24, s[20:23], s52 offen offset:288" % (36 + i))
    if i < 3:
        e("s_add_u32 s52, s52, s54")
        if i == 1: E("s_cmp_lt_u32 s48, 36", "s_cselect_b32 s52, s52, 0", "s_cselect_b32 s54, s54, 0")
E("s_mov_b32 s53, 0", "s_mov_b32 s55, 0")
lab("L_ld_done")
ndma = [0]
def dma_u0(n):
    for i in range(n):
        k = ndma[0]; ndma[0] += 1
        E("v_lshrrev_b32 v114, 16, v112", "s_mov_b32 m0, s40", "v_mad_u32_u24 v%d, v114, s42, v113" % (232 + k),
          "v_add_u32 v112, %d, v112" % (256 * 1821), "buffer_load_dwordx4 v%d, s[12:15], 0 offen nt lds" % (232 + k),
          "v_add_u32 v113, 4096, v113", "s_add_u32 s40, s40, 4096")
XPF = opt("xpf", 1)
NXP = 0
if XPF:
    c("pull the lines of this workgroup's own 128 rows that hold u0 data towards L2 (40 lanes per wave)")
    NXP = 1
    E("s_add_u32 s101, s31, 128", "s_mul_i32 s101, s101, 288", "s_mul_i32 s3, s28, 9216", "s_add_u32 s101, s101, s3",
      "v_min_u32 v116, 39, v0", "v_mul_u32_u24 v117, 13108, v116", "v_lshrrev_b32 v117, 16, v117",
      "v_mul_u32_u24 v118, %d, v117" % (1152 - 640), "v_lshl_add_u32 v117, v116, 7, v118",
      "buffer_load_dword v31, v117, s[12:15], s101 offen nt")
XB2 = ["v_and_b32 v116, 31, v0", "v_lshrrev_b32 v118, 2, v116", "v_mul_u32_u24 v118, %d, v118" % (1152 - 512), "v_lshl_add_u32 v118, v116, 7, v118",
      "buffer_load_dword v31, v118, s[12:15], s101 offen offset:640 nt"]
if flag("xbearly"):
    E(*XB2); NXP = 2
dma_u0(EARLY)
stamp("p")
E("s_mov_b32 s60, s58", "s_mov_b32 s61, s59", "s_mov_b32 s16, s58", "s_and_b32 s17, s59, 0xffff", "s_mov_b32 s38, 0xffff0000",
  "s_cmp_ge_u32 s63, 864", "s_cbranch_scc1 L_wo_st")
c("W production: destination addressing")
E("s_and_b32 s54, s50, 7", "s_lshr_b32 s55, s50, 3", "s_mul_i32 s3, s54, 18", "s_add_u32 s3, s3, s51", "s_lshr_b32 s52, s3, 2",
  "s_and_b32 s53, s3, 3", "s_lshr_b32 s54, s54, 2", "s_mul_i32 s3, s54, 36", "s_add_u32 s3, s3, s52", "s_mul_i32 s3, s3, 18432",
  "s_mul_i32 s55, s55, 9216", "s_add_u32 s3, s3, s55", "s_lshl_b32 s53, s53, 8", "s_add_u32 s52, s3, s53",
  "s_cmp_eq_u32 s54, 0", "s_cselect_b32 s53, 2, 1", "s_cselect_b32 s55, 1, 2",
  "s_mul_i32 s53, s53, %d" % (18 * 18432), "s_mul_i32 s55, s55, %d" % (18 * 18432), "s_add_u32 s53, s53, s52", "s_add_u32 s55, s55, s52",
  "s_mul_i32 s3, s28, 4608", "s_add_u32 s3, s3, %d" % D1, "v_lshlrev_b32 v25, 5, v0", "v_add_u32 v25, s3, v25", "v_add_u32 v26, s3, v9",
  "s_mul_i32 s3, s49, 6", "v_lshrrev_b32 v20, 4, v0", "v_add_u32 v20, s3, v20", "v_add_u32 v21, 3, v20",
  "v_mov_b32 v27, %d" % (1990656 - 9216), "v_and_b32 v28, 15, v0", "v_lshlrev_b32 v28, 4, v28", "s_mov_b32 exec_hi, 0xffff")
for h in range(2):
    E("v_cmp_le_u32 vcc, 9, v%d" % (20 + h), "v_lshl_add_u32 v%d, v%d, 10, v28" % (20 + h, 20 + h), "s_nop 0",
      "v_cndmask_b32 v29, 0, v27, vcc", "v_add_u32 v%d, v%d, v29" % (216 + h, 20 + h))
E("s_mov_b32 s36, 0x05040100", "s_mov_b32 s37, 0x07060302", "s_waitcnt vmcnt(%d)" % (EARLY + NXP))
stamp("p")
for r in range(8):
    E("v_lshlrev_b32 v64, 16, v%d" % (32 + r), "v_and_b32 v65, s38, v%d" % (32 + r), "v_lshlrev_b32 v66, 16, v%d" % (40 + r),
      "v_and_b32 v67, s38, v%d" % (40 + r), "v_pk_add_f32 v[%d:%d], v[64:65], v[66:67]" % (72 + 2 * r, 73 + 2 * r))
for h in range(2):
    for i in range(4): e("v_cvt_pk_bf16_f32 v%d, v%d, v%d" % (88 + 4 * h + i, 72 + 4 * i + h, 72 + 4 * i + 2 + h))
E("ds_write_b128 v25, v[88:91]", "ds_write_b128 v25, v[92:95] offset:16", "ds_read_b128 v[88:91], v26", "ds_read_b128 v[92:95], v26 offset:768")
for h in range(2):
    for i in range(4): e("v_perm_b32 v%d, v%d, v%d, s%d" % (48 + 4 * h + i, 32 + 2 * i + 1, 32 + 2 * i, 36 + h))
E("s_waitcnt lgkmcnt(0)", "buffer_store_dwordx4 v[88:91], v216, s[16:19], s52 offen sc1", "buffer_store_dwordx4 v[92:95], v217, s[16:19], s52 offen sc1")
for h in range(2):
    for i in range(4): e("v_perm_b32 v%d, v%d, v%d, s%d" % (56 + 4 * h + i, 40 + 2 * i + 1, 40 + 2 * i, 36 + h))
E("ds_write_b128 v25, v[48:51] offset:1536", "ds_write_b128 v25, v[52:55] offset:1552",
  "ds_write_b128 v25, v[56:59] offset:3072", "ds_write_b128 v25, v[60:63] offset:3088")
for k in range(4): e("ds_read_b128 %s, v26 offset:%d" % (rng("v", 200 + 4 * k), 1536 + 768 * k))
E("s_mov_b64 exec, -1", "s_branch L_st_done")
lab("L_wo_st")
E("s_cmp_ge_u32 s48, 54", "s_cbranch_scc1 L_st_done", "s_waitcnt vmcnt(%d)" % (EARLY + NXP))
for i in range(4): e("v_lshl_or_b32 v%d, v%d, 16, v%d" % (32 + i, 36 + i, 32 + i))
E("s_cmp_ge_u32 s48, 36", "s_cbranch_scc1 L_wo8_st", "s_lshl_b32 s3, s48, 10", "s_add_u32 s3, s3, %d" % WS_WO,
  "buffer_store_dwordx4 v[32:35], v9, s[16:19], s3 offen sc1", "s_branch L_st_done")
lab("L_wo8_st")
E("v_lshlrev_b32 v25, 3, v0", "s_lshl_b32 s3, s50, 9", "s_add_u32 s3, s3, %d" % WS_WO8, "buffer_store_dwordx2 v[32:33], v25, s[16:19], s3 offen sc1")
lab("L_st_done")
stamp("p")
SA = opt("sa", 5)
NA = 12 * SA if not flag("nosplit") else 252
E("buffer_load_dword v29, v30, s[44:47], 0 offen sc1",
  "s_mov_b32 s36, 0x4000", "v_cmp_eq_u32 vcc, 0, v19", "v_mov_b32 v28, %d" % BIG, "s_lshl_b32 s4, %s, 7" % PID, "s_add_u32 s4, s4, %d" % WS_F1,
  "v_cndmask_b32 v28, v28, 0, vcc", "s_lshl_b32 s5, s2, 2", "s_add_u32 s5, s5, %d" % WS_F1P,
  "s_cmp_lt_u32 s2, %d" % NA, "s_cbranch_scc1 L_pub")
c("early producers publish first, the others fetch their x tile first")
lab("L_dma")
dma_u0(12)
E("s_cmp_lt_u32 s2, %d" % NA, "s_cbranch_scc1 L_after")
lab("L_pub")
E("s_waitcnt vmcnt(0)", "s_branch L_epchk")
lab("L_ep")
E("buffer_load_dword v29, v30, s[44:47], 0 offen sc1", "s_waitcnt vmcnt(0)")
lab("L_epchk")
E("v_readfirstlane_b32 s62, v29", "s_cmp_lg_u32 s62, 0", "s_cbranch_scc1 L_epok", "s_sub_u32 s36, s36, 1", "s_cmp_lg_u32 s36, 0", "s_cbranch_scc1 L_ep")
lab("L_epok")
c("publish (only thread 0 has an in-range offset in v28)")
E("s_waitcnt lgkmcnt(0)", "s_barrier", "buffer_store_dword v29, v28, s[16:19], s4 offen sc1", "buffer_store_dword v29, v28, s[16:19], s5 offen sc1",
  "s_cmp_lt_u32 s2, %d" % NA, "s_cbranch_scc1 L_dma")
lab("L_after")
stamp("p")
c("first stage: flags of the earliest producers")
E("s_mul_i32 s6, s28, %d" % (3 * SA * 128), "s_add_u32 s6, s6, %d" % WS_F1, "v_min_u32 v25, %d, v0" % (3 * SA - 1), "v_lshlrev_b32 v25, 7, v25", "s_mov_b32 s5, 0x4000",
  "buffer_load_dword v24, v25, s[16:19], s6 offen sc1")
if XPF and not flag("xbearly"):
    c("... and the remaining lines (32 lanes per wave)")
    E("v_and_b32 v116, 31, v0", "v_lshrrev_b32 v118, 2, v116", "v_mul_u32_u24 v118, %d, v118" % (1152 - 512), "v_lshl_add_u32 v118, v116, 7, v118",
      "buffer_load_dword v31, v118, s[12:15], s101 offen offset:640 nt")
c("prefetch the code into L2")
e("s_getpc_b64 s[46:47]")
lab("L_pc")
c("each workgroup of an XCD touches a 2 KiB slice (8 lines of 64 B per wave)")
E("s_lshr_b32 s3, s100, 3", "s_lshl_b32 s3, s3, 2", "s_add_u32 s3, s3, s28", "s_lshl_b32 s3, s3, 9",
  "v_and_b32 v20, 7, v0", "v_lshlrev_b32 v20, 6, v20", "v_add_u32 v20, s3, v20", "v_min_u32 v22, L_codeend-L_pc-4, v20",
  "global_load_dword v31, v22, s[46:47]" + (" nt" if flag("pfnt") else ""))
c("misc setup")
E("s_mov_b32 s24, s10", "s_and_b32 s25, s11, 0xffff", "s_mov_b32 s26, 9216000", "s_mov_b32 s27, 0x20000",
  "s_lshl_b32 s3, s39, 1", "s_add_u32 s3, s3, s30", "s_mul_i32 s34, s3, %d" % (54 * 18432), "s_add_u32 s35, s34, 9216",
  "s_lshl_b32 s3, s29, 12", "v_add_u32 v1, s3, v9", "v_add_u32 v2, 8192, v9", "v_and_b32 v20, 15, v0", "v_lshrrev_b32 v21, 4, v0",
  "s_lshl_b32 s3, s30, 3", "s_sub_u32 s3, 8, s3", "v_add_u32 v3, s3, v20", "v_mul_u32_u24 v3, 288, v3", "v_lshl_add_u32 v3, v21, 4, v3",
  "s_mul_i32 s3, s29, 9216", "s_sub_u32 s37, %d, s3" % U0, "s_add_u32 s3, s3, %d" % U0,
  "v_add_u32 v10, s37, v3", "v_add_u32 v3, s3, v3", "v_lshrrev_b32 v21, 1, v21", "v_mul_u32_u24 v21, 864, v21",
  "v_sub_u32 v13, v3, v21", "v_sub_u32 v11, v10, v21",
  "s_cmp_eq_u32 s30, 0", "s_mov_b32 s3, %d" % (D1 - U0), "s_cselect_b32 s43, %d, s3" % (D0 - U0),
  "s_mov_b32 s3, %d" % ARR, "s_cselect_b32 s44, %d, s3" % (-ARR))
c("transform: strip addressing (seg, col): v12 LDS d1 (+ARR: d0), v14 LDS u0, v15 global u1m")
E("v_min_u32 v20, 251, v19", "v_mul_u32_u24 v21, 1821, v20", "v_lshrrev_b32 v21, 16, v21", "v_mul_u32_u24 v22, %d, v21" % (6912 - 576),
  "v_lshl_add_u32 v22, v20, 4, v22", "v_add_u32 v12, %d, v22" % D1, "v_add_u32 v14, %d, v22" % U0,
  "v_mul_u32_u24 v21, 6912, v21", "s_sub_u32 s3, s31, 62", "s_mul_i32 s3, s3, 288", "v_add3_u32 v15, v22, v21, s3",
  "s_lshl_b32 s7, s2, 2", "s_add_u32 s7, s7, %d" % WS_F2, "s_mov_b32 s45, %d" % WS_F1P, "s_mov_b32 s46, %d" % WS_F2,
  "s_add_u32 s36, s34, 18432", "s_add_u32 s37, s35, 18432", "s_add_u32 s48, s36, 18432", "s_add_u32 s49, s37, 18432")
stamp("p")
E("s_waitcnt vmcnt(2)", "s_branch L_poll1_c")
lab("L_poll1")
E("buffer_load_dword v24, v25, s[16:19], s6 offen sc1", "s_waitcnt vmcnt(0)")
lab("L_poll1_c")
E("v_cmp_ne_u32 vcc, s62, v24", "s_nop 1", "s_cmp_eq_u64 vcc, 0",
  "s_cbranch_scc1 L_poll1_ok", "s_sleep 1", "s_sub_u32 s5, s5, 1", "s_cmp_lg_u32 s5, 0", "s_cbranch_scc1 L_poll1")
lab("L_poll1_ok")
e("s_barrier")
stamp("p")
flat(wloads(0))
for bi in range(11): e(xread(FORD[bi], 0))
if STAMPS: e("s_waitcnt vmcnt(0)")
stamp("a")

slow = []
def flag_check(name, sreg):
    it = ["v_xor_b32 v24, s62, v24", "v_xor_b32 v25, s62, v25", "v_xor_b32 v26, s62, v26", "v_xor_b32 v27, s62, v27",
          "v_or3_b32 v24, v24, v25, v26", "v_or_b32 v24, v24, v27", dict(ins="v_cmp_ne_u32 s[4:5], 0, v24", gap=2),
          "s_and_b32 s5, s5, 0x7fffffff", "s_cmp_lg_u64 s[4:5], 0\ns_cbranch_scc1 %s\n%s_ret:" % (name, name)]
    slow.extend([name + ":", "s_mov_b32 s6, 0x4000", name + "_l:", "buffer_load_dwordx4 v[24:27], v9, s[16:19], s%d offen sc1" % sreg, "s_waitcnt vmcnt(0)"]
                + [x if isinstance(x, str) else x["ins"] + "\ns_nop 1" for x in it[:-1]]
                + ["s_cmp_eq_u64 s[4:5], 0", "s_cbranch_scc1 %s_ret" % name, "s_sleep 2", "s_sub_u32 s6, s6, 1", "s_cmp_lg_u32 s6, 0",
                   "s_cbranch_scc1 %s_l" % name, "s_branch %s_ret" % name])
    return it

s = Seg("A", vtags={"W0": 0})
for sg in range(48):
    s.superstep(sg, "A" if sg < 36 else "V", wload=(0 < sg < 47), xswitch={17: "s43", 35: "s44"}.get(sg))
ss = lambda sg: s.ss0[sg]
seen = set()
for i in range(72):
    d = s.mf[i].split()[1].rstrip(",")
    if d not in seen:
        seen.add(d); s.mf[i] = s.mf[i][:s.mf[i].rindex(",")] + ", 0"
it = [dict(ins=x, gap=2) for x in wloads(1, (36, 37))] + [dict(ins=x, gap=3) for x in wloads(2, (48, 49))]
it += ["s_add_u32 s34, s34, %d" % (3 * 18432), "s_add_u32 s35, s35, %d" % (3 * 18432)]
p = s.pour(it, 1); assert p < 72
RB = lambda k: 176 + 4 * (k % 5)
for k in range(13):
    it = ["buffer_load_dwordx4 %s, v15, s[12:15], 0 offen @B%d" % (rng("v", RB(k)), k), "v_add_u32 v15, 1152, v15"]
    if 1 <= k <= 4 and not flag("noh"):
        hk = {1: (200, 216, 53), 2: (204, 217, 53), 3: (208, 216, 55), 4: (212, 217, 55)}[k]
        it.append("buffer_store_dwordx4 %s, v%d, s[16:19], s%d offen sc1" % (rng("v", hk[0]), hk[1], hk[2]))
    p = s.pour(it, ss(k) + (62 if k == 0 else 60)); assert p < ss(k + 1)
s.pour(["buffer_load_dwordx4 v[24:27], v9, s[16:19], s45 offen sc1 @F1"], ss(SA - 4) + 58)
s.put(ss(7), "s_barrier")
s.pour(["buffer_store_dword v29, v28, s[16:19], s7 offen sc1"], ss(7) + 34)
s.pour(["@vwait B0"] + sum([["v_lshlrev_b32 v%d, 16, v%d" % (120 + 2 * k, RB(0) + k), "v_and_b32 v%d, s38, v%d" % (121 + 2 * k, RB(0) + k)] for k in range(4)], []), ss(3) + 36)
def t_elem(k):
    h = k % 2
    C = 120 + 8 * h; N = 120 + 8 * (1 - h); A = 144; B = RB(k + 1)
    it = [dict(ins="ds_read_b128 %s, v14 offset:%d @t%d" % (rng("v", A), 576 * k, k), gap=8), "@wait t%d" % k, "@vwait B%d" % (k + 1)]
    O = 160
    for r in range(4):
        t = 136 + 2 * (r % 2)
        it += ["v_lshlrev_b32 v%d, 16, v%d" % (t, A + r), "v_and_b32 v%d, s38, v%d" % (t + 1, A + r),
               "v_lshlrev_b32 v%d, 16, v%d" % (N + 2 * r, B + r), "v_and_b32 v%d, s38, v%d" % (N + 2 * r + 1, B + r),
               "v_sub_f32 v%d, v%d, v%d" % (C + 2 * r, C + 2 * r, t), "v_sub_f32 v%d, v%d, v%d" % (C + 2 * r + 1, C + 2 * r + 1, t + 1),
               "v_sub_f32 v%d, v%d, v%d" % (t, N + 2 * r, t), "v_sub_f32 v%d, v%d, v%d" % (t + 1, N + 2 * r + 1, t + 1),
               "v_cvt_pk_bf16_f32 v%d, v%d, v%d" % (O + r, C + 2 * r, C + 2 * r + 1), "v_cvt_pk_bf16_f32 v%d, v%d, v%d" % (O + 4 + r, t, t + 1)]
    for q in range(2):
        it.append("ds_write_b64 v12, %s offset:%d" % (rng("v", O + 2 * q, 2), ARR + 576 * k + 8 * q))
        it.append("ds_write_b64 v12, %s offset:%d" % (rng("v", O + 4 + 2 * q, 2), 576 * k + 8 * q))
    return it
for k in range(12):
    p = s.pour(t_elem(k), ss(k + 4) + 2); assert p < ss(k + 5), (k, p - ss(k + 4))
p = s.pour(["@vwait F1"] + flag_check("L_sl1", 45), ss(SA - 3) + 50); assert p < ss(SA - 2)
s.put(ss(16) + 30, "s_waitcnt lgkmcnt(0)"); s.put(ss(16) + 30, "s_barrier")
s.pour(["buffer_load_dwordx4 v[24:27], v9, s[16:19], s46 offen sc1 @F2"], ss(13) + 34)
p = s.pour(["@vwait F2"] + flag_check("L_sl2", 46), ss(15) + 30); assert p < ss(16)
items = []
order = sorted(range(36), key=lambda t: [x for x in s.touch[acc("A", t)] if x < ss(18)][-1])
for t in order:
    tt = s.touch[acc("A", t)]
    last = [x for x in tt if x < ss(18)][-1]; nxt = [x for x in tt if x >= ss(18)][0]
    for r in range(4):
        items.append(dict(ins="v_accvgpr_read_b32 v%d, a%d" % (112 + 4 * t + r, acc("A", t)[1] + r), rel=last + 9, dl=nxt))
s.pour(items, ss(17))
if flag("early_st"):
    for q in (1, 2, 3, 5, 7, 9): s.put(ss(q), "@stamp")
else: s.put(ss(9), "@stamp")
s.put(ss(21), "@stamp"); s.put(ss(33), "@stamp")
CB = {48: 0, 49: 3, 50: 4, 51: 5, 52: 1, 53: 2}
PORD = [0, 1, 3, 2]
for q, pl in enumerate(PORD): s.pairpass(pl, list(range(48, 54)), CB, q == 0)
hs = lambda pl, cc: s.ss0[(pl, cc)]
s.put(hs(0, 48), "s_waitcnt lgkmcnt(1)")
s.put(hs(0, 48) + 1, xread(FORD[11], 48))
s.put(hs(1, 48), "s_waitcnt lgkmcnt(0)")
s.pour(["s_add_u32 s34, s34, %d" % (3 * 18432), "s_add_u32 s35, s35, %d" % (3 * 18432)] + [dict(ins=x, gap=3) for x in wloads(52, b=1)]
       + ["s_add_u32 s34, s34, 18432", "s_add_u32 s35, s35, 18432"], ss(47) + 2)
s.pour([dict(ins=x, gap=2) for x in wloads(53, b=2)], hs(0, 48) + 2)
s.pour(["s_add_u32 s48, s34, %d" % (8 * 18432), "s_add_u32 s49, s35, %d" % (8 * 18432)], ss(38) + 40)
ex = []
for k in range(3):
    l = wloads(49 + k, (48, 49), b=3 + k)
    l[-1] = l[-1] + "|s_add_u32 s48, s48, 18432|s_add_u32 s49, s49, 18432"
    ex += l
EXS = [38, 39, 40, 41, 42, 43, 44, 45, 46, 47]
for q, sg in enumerate(EXS):
    it = []
    for x in ex[3 * q:3 * q + 3]:
        parts = x.split("|")
        it.append(dict(ins=parts[0], gap=3)); it += parts[1:]
    p = s.pour(it, ss(sg) + 42); assert p < ss(sg + 1) + 3
s.pour(["s_mul_i32 s46, s28, 12288", "s_add_u32 s46, s46, %d" % U0, "v_add_u32 v14, s46, v9", "s_xor_b32 s47, s28, 2",
        "s_mul_i32 s47, s47, 12288", "s_add_u32 s46, s47, %d" % U0, "s_add_u32 s47, s47, %d" % WS_WO, "v_add_u32 v15, s46, v9"], ss(33) + 36)
s.put(ss(35), "s_barrier")
def wr(r, i, reg):
    t = ROUNDS[r][i]; a = acc("A", t)
    return [dict(ins="ds_write_b64 v%d, %s offset:%d" % (reg, rng("a", a[1] + 2 * h, 2), 1024 * i + 8 * h), rd=a) for h in range(2)]
s.pour([x for i in range(12) for x in wr(0, (i + 8) % 12, 14)], ss(36))
RS = {1: 37, 2: 39, 3: 41}
for r in range(1, 4):
    sg = RS[r]
    s.put(ss(sg), "s_waitcnt lgkmcnt(0)"); s.put(ss(sg), "s_barrier")
    reg = 15 if r % 2 == 1 else 14
    items = []
    def rd(gq):
        for i in range(2):
            items.append("ds_read_b128 %s, v%d offset:%d @x%d_%d" % (rng("v", 16 + 8 * (gq % 2) + 4 * i), reg, 1024 * (2 * gq + i), r, gq))
    rd(0); rd(1)
    items[-1] = dict(ins=items[-1], gap=6)
    for gq in range(6):
        items.append("@wait x%d_%d" % (r, gq))
        for i in range(2):
            t = ROUNDS[r - 1][2 * gq + i]
            for k in range(4):
                items.append(dict(ins="v_add_f32 v%d, v%d, v%d" % (112 + 4 * t + k, 112 + 4 * t + k, 16 + 8 * (gq % 2) + 4 * i + k), wr=acc("V", t)))
        if gq + 2 < 6: rd(gq + 2)
        if r < 3:
            for i in range(2): items += wr(r, 2 * gq + i, reg)
    p = s.pour(items, ss(sg) + 2)
    assert p < ss(sg + 2) - 8, (r, p - ss(sg))
for sg in range(43, 46):
    it = []
    for i in range(4):
        it += [dict(ins="s_mov_b32 m0, s46", gap=1), "buffer_load_dwordx4 v9, s[16:19], s47 offen sc1 lds", "s_add_u32 s46, s46, 1024", dict(ins="s_add_u32 s47, s47, 1024", gap=2)]
    s.pour(it, ss(sg) + 34)
pre = ["s_mov_b32 s50, 0x4038aa3b", "s_mov_b32 s51, 0x4038aa3b", "s_mov_b32 s52, 0xbfb8aa3b", "s_mov_b32 s53, 0xbfb8aa3b",
       "s_mov_b32 s54, 1.0", "s_mov_b32 s55, 1.0", "s_mov_b32 s56, -2.0", "s_mov_b32 s57, -2.0", "v_mov_b32 v28, 1.0", "v_mov_b32 v29, 1.0",
       "s_mul_i32 s47, s2, %d" % ZS, "s_add_u32 s47, s47, %d" % WS_Z, "s_mul_i32 s3, s28, 7168", "s_add_u32 s45, s47, s3", "s_add_u32 s44, s45, 4096",
       "s_add_u32 s48, s45, %d" % ZS, "s_xor_b32 s3, s28, 1", "s_mul_i32 s3, s3, 7168", "s_add_u32 s49, s47, s3", "s_add_u32 s49, s49, %d" % (ZS + 4096),
       "v_lshlrev_b32 v12, 3, v0", "s_lshl_b32 s3, s28, 11", "v_add_u32 v14, s3, v9", "s_xor_b32 s3, s3, 2048", "v_add_u32 v15, s3, v9",
       "v_mov_b32 v27, s62",
       "s_lshl_b32 s3, s39, 1", "s_add_u32 s3, s3, s29", "s_lshl_b32 s3, s3, 10", "s_add_u32 s3, s3, %d" % U0,
       "v_add_u32 v16, s3, v9", "s_xor_b32 s3, s3, 1024", "v_add_u32 v17, s3, v9",
       "s_xor_b32 s3, s3, 2048", "v_add_u32 v26, s3, v9", "s_xor_b32 s3, s3, 1024", "v_add_u32 v18, s3, v9",
       "s_mul_i32 s3, s39, 4608", "s_add_u32 s3, s3, %d" % (U0 + 36864), "v_add_u32 v19, s3, v12",
       "v_and_b32 v20, 15, v0", "v_lshrrev_b32 v21, 4, v0", "v_mul_u32_u24 v22, 288, v20", "s_mul_i32 s3, s28, 9216", "s_add_u32 s3, s3, %d" % D1,
       "v_add_u32 v22, s3, v22", "v_lshl_add_u32 v24, v21, 4, v22", "v_lshl_add_u32 v25, v21, 3, v22", "v_add_u32 v23, s3, v9",
       "s_mul_i32 s3, s32, 16000", "s_add_u32 s3, s3, s31", "s_add_u32 s3, s3, 130",
       "s_lshl_b32 s4, s29, 6", "s_add_u32 s3, s3, s4", "s_lshl_b32 s4, s30, 1", "s_sub_u32 s3, s3, s4", "s_mul_i32 s63, s3, 288",
       "s_mov_b32 s36, 0x4000"]
i12 = pre.index("v_lshlrev_b32 v12, 3, v0")
i16 = pre.index("v_mov_b32 v27, s62") + 1
i19 = pre.index("v_add_u32 v19, s3, v12") + 1
p = s.pour([pre[i12]] + pre[i16:i19], ss(46) + 50); assert p < hs(0, 48)
p = s.pour(pre[:i16] + pre[i19:], hs(0, 49) + 4); assert p < hs(0, 53)
s.put(hs(0, 48), "s_barrier")
FREE = [40, 44, 88, 92, 136, 140, 232, 236, 240, 244, 248, 252] + [144 + 4 * i for i in range(6)]
WOR = {}
for i in range(18): WOR[(i % 9, i // 9)] = FREE[i]
for i in range(18): WOR[(i % 9, 2 + i // 9)] = 4 * i if i < 10 else 48 + 4 * (i - 10)
WO8 = lambda no: 96 + 2 * no
def wo_read(no, k): return "ds_read_b128 %s, v%d offset:%d" % (rng("a", WOR[(no, k)]), [16, 17, 18, 26][k], no * 4096)
s.pour([dict(ins=wo_read(i % 9, i // 9), gap=3) for i in range(12)], hs(0, 51) + 2)
WOL = [wo_read(i % 9, i // 9) for i in range(12, 18)]
def act_np(R, z):
    return ["v_mul_f32 v%d, s50, v%d" % (R, R), "v_mul_f32 v%d, s50, v%d" % (R + 1, R + 1), "v_mul_f32 v%d, s52, v%d" % (R + 2, R + 2), "v_mul_f32 v%d, s52, v%d" % (R + 3, R + 3)] \
        + ["v_exp_f32 v%d, v%d" % (R + k, R + k) for k in range(4)] + ["v_add_f32 v%d, 1.0, v%d" % (R + k, R + k) for k in range(4)] \
        + ["v_rcp_f32 v%d, v%d" % (R + k, R + k) for k in range(4)] \
        + ["v_fma_f32 v%d, v%d, -2.0, 1.0" % (R + k, R + k) for k in range(2)] + ["v_mul_f32 v%d, v%d, v%d" % (R + k, R + k, R + 2 + k) for k in range(2)] \
        + ["v_cvt_pk_bf16_f32 v%d, v%d, v%d" % (z, R, R + 1)]
PT = []
TR = lambda t: 112 + 4 * t
def gst(R, sreg, off): return ["v_mov_b32 v%d, s62" % (R + 3), "buffer_store_dwordx4 %s, v9, s[16:19], s%d offen offset:%d sc1" % (rng("v", R), sreg, off)]
for pr in range(2):
    n0 = 2 * pr; sreg = 45 if pr == 0 else 44
    for q in range(2):
        for ml in range(3):
            PT.append((ml * 8 + n0 + q, TR(n0 + q) + ml, gst(TR(n0 + q), sreg, 1024 * q) if ml == 2 else None))
    PT.append((24 + n0, TR(24 + n0), None))
    PT.append((24 + n0 + 1, TR(24 + n0) + 1, gst(TR(24 + n0), sreg, 2048) if pr == 1 else None))
    if pr == 0:
        PT.append((32, TR(24) + 2, gst(TR(24), sreg, 2048)))
        PT.append((33, TR(33), ["v_mov_b32 v%d, s62" % (TR(33) + 1), "buffer_store_dwordx2 %s, v12, s[16:19], s45 offen offset:3072 sc1" % rng("v", TR(33), 2)]))
for u in range(2):
    for ml in range(4):
        PT.append((ml * 8 + 6 + u, 112 + 4 * (6 + u) + ml, ["ds_write_b128 v14, %s offset:%d" % (rng("v", 112 + 4 * (6 + u)), 1024 * u)] if ml == 3 else None))
NSH = opt("nsh", 17)
it = []
for t, z, st in PT[:NSH]:
    a = act_np(112 + 4 * t, z)
    a[0] = dict(ins=a[0], rel=s.touch[acc("V", t)][-1] + 9)
    it += a
    if st: it += st
p = s.pour(it, hs(1, 48))
p2 = s.pour(WOL, hs(3, 48) + 4)
sys.stderr.write("shadow activation ends at slot %d of %d\n" % (p - hs(1, 48), len(s.mf) - hs(1, 48)))
if not flag("nopf2"):
    s.pour(["s_getpc_b64 s[4:5]\nL_pc2:", "s_lshr_b32 s3, s100, 3", "s_lshl_b32 s3, s3, 2", "s_add_u32 s3, s3, s28", "s_lshl_b32 s3, s3, 8",
            "v_and_b32 v4, 3, v0", "v_lshlrev_b32 v4, 6, v4", "v_add_u32 v4, s3, v4", "v_min_u32 v4, L_codeend-L_pc2-4, v4",
            "global_load_dword v5, v4, s[4:5]"], ss(34) + 40)
s.put(ss(43), "@stamp")
s.emit()
stamp()
def act_tile(R, z):
    return ["v_pk_mul_f32 v[%d:%d], v[%d:%d], s[50:51]" % (R, R + 1, R, R + 1),
        "v_pk_mul_f32 v[%d:%d], v[%d:%d], s[52:53]" % (R + 2, R + 3, R + 2, R + 3),
        "v_exp_f32 v%d, v%d" % (R, R), "v_exp_f32 v%d, v%d" % (R + 1, R + 1),
        "v_exp_f32 v%d, v%d" % (R + 2, R + 2), "v_exp_f32 v%d, v%d" % (R + 3, R + 3),
        "v_pk_add_f32 v[%d:%d], v[%d:%d], s[54:55]" % (R, R + 1, R, R + 1),
        "v_rcp_f32 v%d, v%d" % (R, R),
        "v_pk_add_f32 v[%d:%d], v[%d:%d], s[54:55]" % (R + 2, R + 3, R + 2, R + 3),
        "v_rcp_f32 v%d, v%d" % (R + 1, R + 1),
        "v_rcp_f32 v%d, v%d" % (R + 2, R + 2), "v_rcp_f32 v%d, v%d" % (R + 3, R + 3),
        "v_pk_fma_f32 v[%d:%d], v[%d:%d], s[56:57], v[28:29]" % (R, R + 1, R, R + 1),
        "v_pk_mul_f32 v[%d:%d], v[%d:%d], v[%d:%d]" % (R, R + 1, R, R + 1, R + 2, R + 3),
        "v_cvt_pk_bf16_f32 v%d, v%d, v%d" % (z, R, R + 1)]
stamp("e")
c("activation: remaining partner-destined tiles")
for t, z, st in PT[NSH:]:
    E(*act_tile(112 + 4 * t, z))
    if st: E(*st)
E("s_waitcnt lgkmcnt(0)", "s_barrier")
E("s_cmp_eq_u32 s33, 125", "s_cbranch_scc1 L_end")
stamp()
stamp("e")
for u in range(2): e("ds_read_b128 %s, v15 offset:%d" % (rng("v", 72 + 4 * u), 1024 * u))
c("own tiles (local 4,5)")
LA = ["buffer_load_dwordx4 v[80:83], v9, s[16:19], s48 offen sc1", "buffer_load_dwordx4 v[84:87], v9, s[16:19], s48 offen offset:1024 sc1",
      "buffer_load_dwordx4 v[88:91], v9, s[16:19], s48 offen offset:2048 sc1", "buffer_load_dwordx2 v[92:93], v12, s[16:19], s48 offen offset:3072 sc1"]
LB = ["buffer_load_dwordx4 %s, v9, s[16:19], s49 offen offset:%d sc1" % (rng("v", 96 + 4 * i), 1024 * i) for i in range(3)]
LAAT = opt("laat", 0); LBAT = opt("lbat", 5)
tiles = [(ml * 8 + 4, 48 + ml) for ml in range(4)] + [(34, 66)] + [(ml * 8 + 5, 52 + ml) for ml in range(4)] + [(35, 68)]
for i, (t, z) in enumerate(tiles):
    if i == LAAT: E(*LA)
    if i == LBAT: E(*LB)
    E(*act_tile(112 + 4 * t, z))
stamp("e")
c("partner stores of this wave must have left their registers before GEMM2 overwrites them")
e("s_waitcnt vmcnt(7) lgkmcnt(0)")
a2 = lambda u, no: 112 + (u * 9 + no) * 4
def tagchk(name, tags, loads, nafter):
    it = []
    E("s_waitcnt vmcnt(%d)" % nafter)
    lab(name)
    E("v_min3_u32 v4, v%d, v%d, v%d" % tuple(tags[:3]), "v_max3_u32 v5, v%d, v%d, v%d" % tuple(tags[:3]))
    if len(tags) > 3: E("v_min_u32 v4, v4, v%d" % tags[3], "v_max_u32 v5, v5, v%d" % tags[3])
    E("v_xor_b32 v4, s62, v4", "v_xor_b32 v5, s62, v5", "v_or_b32 v4, v4, v5", "v_cmp_ne_u32 vcc, 0, v4", "s_nop 1", "s_cmp_lg_u64 vcc, 0",
      "s_cbranch_scc1 %s_r" % name)
    lab(name + "_ok")
    slow.extend([name + "_r:", "s_sub_u32 s36, s36, 1", "s_cmp_eq_u32 s36, 0", "s_cbranch_scc1 %s_ok" % name] + loads + ["s_waitcnt vmcnt(0)", "s_branch " + name])
g = Seg("g2a")
for k in range(2):
    for no in range(9):
        for u in range(2):
            z = (48 + 4 * u) if k == 0 else 72 + 4 * u
            d = rng("v", a2(u, no))
            g.slot("v_mfma_f32_16x16x32_bf16 %s, %s, %s, %s" % (d, rng("a", WOR[(no, k)]), rng("v", z), "0" if k == 0 else d), ("v", a2(u, no)))
rd = []
for no in range(9):
    rd += [wo_read(no, 2), wo_read(no, 3), "ds_read_b64 %s, v19 offset:%d" % (rng("a", WO8(no), 2), no * 512)]
g.pour([dict(ins=x, gap=1) for x in rd], 0)
oa = ["v_mul_u32_u24 v4, 1821, v0"]
for i in range(9):
    oa += ["v_lshrrev_b32 v5, 16, v4", "v_mad_u32_u24 v%d, v5, s42, v9" % (32 + i)]
    if i < 8: oa.append("v_add_u32 v4, %d, v4" % (64 * 1821))
g.pour(oa, 0)
g.emit()
stamp("e")
tagchk("L_ca", [83, 87, 91, 93], LA, 3)
E("v_mov_b32 v83, v88", "v_mov_b32 v87, v89", "v_mov_b32 v67, v90", "v_mov_b32 v69, v92", "s_waitcnt lgkmcnt(0)", "s_nop 0")
for u in range(2):
    for no in range(9):
        d = rng("v", a2(u, no))
        e("v_mfma_f32_16x16x16_bf16 %s, %s, %s, %s" % (d, rng("a", WO8(no), 2), rng("v", 66 + 2 * u, 2), d))
for u in range(2):
    for no in range(9):
        d = rng("v", a2(u, no))
        e("v_mfma_f32_16x16x32_bf16 %s, %s, %s, %s" % (d, rng("a", WOR[(no, 2)]), rng("v", 80 + 4 * u), d))
stamp("e")
tagchk("L_cb", [99, 103, 107], LB, 0)
E("v_mov_b32 v99, v104", "v_mov_b32 v103, v105", "s_nop 1")
g = Seg("g2b")
items = []
for u in range(2):
    so = "0" if u == 0 else "s63"
    for P in range(5):
        nos = [2 * P, 2 * P + 1] if P < 4 else [8]
        for no in nos:
            d = rng("v", a2(u, no))
            g.slot("v_mfma_f32_16x16x32_bf16 %s, %s, %s, %s" % (d, rng("a", WOR[(no, 3)]), rng("v", 96 + 4 * u), d), ("v", a2(u, no)))
        o = 184 + (u * 5 + P) * 4
        rel = len(g.mf) + 7
        grp = []
        for ee, no in enumerate(nos):
            d = a2(u, no)
            grp.append(dict(ins="v_cvt_pk_bf16_f32 v%d, v%d, v%d" % (o + 2 * ee, d, d + 1), rel=rel))
            grp.append("v_cvt_pk_bf16_f32 v%d, v%d, v%d" % (o + 2 * ee + 1, d + 2, d + 3))
        if P < 4: grp.append("ds_write_b128 v24, %s offset:%d" % (rng("v", o), 4608 * u + 64 * P))
        else: grp.append("ds_write_b64 v25, %s offset:%d" % (rng("v", o, 2), 4608 * u + 256))
        items.append(grp)
NG = 3
g.pour(sum(items[:NG], []), 0)
g.emit()
NT = "" if flag("nont") else " nt"
def ost(i):
    e("s_add_u32 s3, s63, %d" % (4096 * (i // 4))) if i % 4 == 0 else None
    e("buffer_store_dwordx4 %s, v%d, s[24:27], s3 offen offset:%d%s" % (rng("v", 112 + 4 * i), 32 + i, 1024 * (i % 4), NT))
flat(sum(items[NG:5], []))
for i in range(4): e("ds_read_b128 %s, v23 offset:%d" % (rng("v", 112 + 4 * i), 1024 * i))
flat(sum(items[5:8], []))
e("s_waitcnt lgkmcnt(3)")
for i in range(4): ost(i)
flat(sum(items[8:], []))
for i in range(4, 9): e("ds_read_b128 %s, v23 offset:%d" % (rng("v", 112 + 4 * i), 1024 * i))
for i in range(4, 9):
    e("s_waitcnt lgkmcnt(%d)" % (8 - i))
    ost(i)
if STAMPS:
    stamp("e")
    e("s_waitcnt vmcnt(0)")
    stamp("m"); stamp("e")
    stamp_flush(nst[0])
    sys.stderr.write("stamps %d\n" % nst[0])
lab("L_end")
e("s_endpgm")
E(*slow)
lab("L_codeend")
out.append(""".section .rodata,"a"
.p2align 6
.amdhsa_kernel %s_kernel
  .amdhsa_next_free_vgpr 512
  .amdhsa_next_free_sgpr 102
  .amdhsa_accum_offset 256
  .amdhsa_group_segment_fixed_size 0
  .amdhsa_kernarg_size 48
  .amdhsa_user_sgpr_count 2
  .amdhsa_user_sgpr_kernarg_segment_ptr 1
  .amdhsa_system_sgpr_workgroup_id_x 1
.end_amdhsa_kernel""" % NAME)
lines = "\n".join(out).split("\n")
errs = hz.check([l for l in lines if "\\" not in l])
for x in errs[:40]: sys.stderr.write(x + "\n")
mre = re.compile(r"^v_mfma_f32_16x16x32_bf16 (\S+), (\S+), (\S+), (\S+)$")
def shrink(l):
    m = mre.match(l)
    if m and m.group(1) == m.group(4) and "\\" not in l: return "M %s,%s,%s" % (m.group(1), m.group(2), m.group(3))
    return l
txt = "\n".join(shrink(l) for l in lines) + "\n"
sys.stderr.write("%d hazards, %d bytes\n" % (len(errs), len(txt)))
args = [a for a in sys.argv[1:] if not a.startswith("--")]
open(args[0] if args else "cdna_kernels/%s.s" % NAME, "w").write(txt)
```
